```python
import torch

def _softmax(x, axis=-1):
    return torch.softmax(x, dim=axis)
def _gelu(x):
    return torch.nn.functional.gelu(x, approximate="tanh")
def _silu(x):
    return torch.nn.functional.silu(x)
def _sigmoid(x):
    return torch.sigmoid(x)
def _layernorm(x, axis=-1, eps=1e-5):
    m = x.mean(dim=axis, keepdim=True)
    v = x.var(dim=axis, keepdim=True, unbiased=False)
    return (x - m) / torch.sqrt(v + eps)
def _scatter_add(tgt, idx, src, axis=0):
    return tgt.clone().index_add_(axis, idx, src)
def _segment_sum(src, seg, n):
    out = torch.zeros((n,) + src.shape[1:], dtype=src.dtype)
    return out.index_add_(0, seg, src)
def _pad(x, pw):
    flat = tuple(v for pair in reversed(pw) for v in pair)
    return torch.nn.functional.pad(x, flat)

kernel_name = 'interleave_layers__spectral_gfnet__linear_attn_block__prompt'

def setup_inputs():

    _w = (lambda a: (lambda t: t.to(torch.bfloat16) if t.is_floating_point() else t)(torch.as_tensor(a)))
    def _A_setup():
        B, S, D = 1, 2048, 576
        Df = D // 2 + 1
        return {
            "x": _w((lambda *s: torch.randn(*s, dtype=torch.bfloat16) * 0.05)(B, S, D)),
            "w_r": _w((lambda *s: torch.randn(*s, dtype=torch.bfloat16) * 0.4)(S, Df) * 0.02),
            "w_i": _w((lambda *s: torch.randn(*s, dtype=torch.bfloat16) * 0.4)(S, Df) * 0.02),
        }
    _A_in = _A_setup()

    def _B_setup():
        B, S, D = 1, 2048, 576
        return {
            "x": _w((lambda *s: torch.randn(*s, dtype=torch.bfloat16) * 0.05)(B, S, D)),
            "wqkv": _w((lambda *s: torch.randn(*s, dtype=torch.bfloat16) * 0.05)(D, 3 * D)),
            "wo": _w((lambda *s: torch.randn(*s, dtype=torch.bfloat16) * 0.05)(D, D)),
        }
    _B_in = _B_setup()

    return {
        "A_x": _A_in["x"],
        "A_w_r": _A_in["w_r"],
        "A_w_i": _A_in["w_i"],
        "B_x": _B_in["x"],
        "B_wqkv": _B_in["wqkv"],
        "B_wo": _B_in["wo"],
    }

def reference(A_x, A_w_r, A_w_i, B_x, B_wqkv, B_wo):
    def _A_ref(x, w_r, w_i):
        B, S, D = x.shape
        X = (lambda x, axes=(-2,-1): torch.fft.rfft2(x.float(), dim=axes))(x, axes=(-2, -1))
        W = w_r + 1j * w_i
        X = X * W
        y = (lambda x, s, axes=(-2,-1): torch.fft.irfft2(x, s=s, dim=axes).to(torch.bfloat16))(X, (S, D), axes=(-2, -1))
        return y

    def _B_ref(x, wqkv, wo):
        B, S, D = x.shape
        H = 32; Dh = D // H
        qkv = (lambda x, *d: x.permute(*d))((x @ wqkv).reshape(B, S, 3, H, Dh), 2, 0, 3, 1, 4)
        q, k, v = qkv[0], qkv[1], qkv[2]
        phi = lambda t: torch.where(t > 0, t + 1, torch.exp(t)) + 1e-6
        pq, pk = phi(q), phi(k)
        kv = torch.einsum("bhsd,bhse->bhde", pk, v)
        z = torch.einsum("bhsd->bhd", pk)
        num = torch.einsum("bhqd,bhde->bhqe", pq, kv)
        den = torch.einsum("bhqd,bhd->bhq", pq, z)[..., None] + 1e-6
        o = num / den
        return (lambda x, *d: x.permute(*d))(o, 0, 2, 1, 3).reshape(B, S, D) @ wo

    x = A_x
    x = x + _A_ref(_layernorm(x, axis=-1), A_w_r, A_w_i)
    x = x + _B_ref(_layernorm(x, axis=-1), B_wqkv, B_wo)
    x = x + _A_ref(_layernorm(x, axis=-1), A_w_r, A_w_i)
    x = x + _B_ref(_layernorm(x, axis=-1), B_wqkv, B_wo)
    return x
```

```python
import re

REG_RE = re.compile(r'^(-|\|)?(abs\()?([vas])(\d+|\[(\d+):(\d+)\])\)?\|?$')
TRANS = ('v_exp_f32', 'v_log_f32', 'v_rcp_f32', 'v_rsq_f32', 'v_sqrt_f32', 'v_sin_f32', 'v_cos_f32', 'v_rcp_iflag_f32')
SALU_NODST = ('s_cmp', 's_waitcnt', 's_barrier', 's_nop', 's_branch', 's_cbranch', 's_endpgm', 's_sleep', 's_setprio', 's_bitcmp')

def regs_of(tok):
    tok = tok.strip()
    if tok in ('vcc',): return {('s', 106), ('s', 107)}
    if tok == 'vcc_lo': return {('s', 106)}
    if tok == 'vcc_hi': return {('s', 107)}
    if tok == 'exec': return {('s', 126), ('s', 127)}
    if tok == 'exec_lo': return {('s', 126)}
    if tok == 'exec_hi': return {('s', 127)}
    if tok == 'm0': return {('s', 124)}
    m = REG_RE.match(tok)
    if not m: return set()
    kind = m.group(3)
    if m.group(5) is not None:
        lo, hi = int(m.group(5)), int(m.group(6))
    else:
        lo = hi = int(m.group(4))
    return {(kind, i) for i in range(lo, hi + 1)}

def split_ops(s):
    out, depth, cur = [], 0, ''
    for ch in s:
        if ch in '[(': depth += 1
        if ch in '])': depth -= 1
        if ch == ',' and depth == 0:
            out.append(cur.strip()); cur = ''
        else: cur += ch
    if cur.strip(): out.append(cur.strip())
    return out

class Ins:
    __slots__ = ('text', 'mn', 'ops', 'flags', 'rd', 'wr', 'cls', 'passes', 'srcc', 'srcab', 'label', 'target', 'opt', 'dpp', 'wide_store_data', 'states')
    def __init__(self, text, opt=False):
        self.text = text; self.opt = opt
        self.label = None; self.target = None
        self.rd = set(); self.wr = set(); self.cls = 'other'; self.passes = 0
        self.srcc = set(); self.srcab = set(); self.dpp = False; self.wide_store_data = set(); self.states = 1
        t = text.split(';')[0].strip()
        if t.endswith(':'):
            self.label = t[:-1]; self.cls = 'label'; self.mn = ''; self.ops = []; self.flags = ''; self.states = 0; return
        if not t or t.startswith('.'):
            self.cls = 'dir'; self.mn = ''; self.ops = []; self.flags = ''; self.states = 0; return
        p = t.split(None, 1); mn = p[0]; rest = p[1] if len(p) > 1 else ''
        self.mn = mn
        ops = split_ops(rest)
        flags = ''
        if ops:
            last = ops[-1].split(None, 1)
            if len(last) > 1 and not mn.startswith('s_waitcnt'):
                ops[-1] = last[0]; flags = last[1]
        self.ops = ops; self.flags = flags
        R = [regs_of(o) for o in ops]
        U = lambda l: set().union(*l) if l else set()
        fl = flags.split()
        if mn.startswith('v_mfma'):
            self.cls = 'mfma'; self.wr = R[0]; self.rd = U(R[1:]); self.srcab = R[1] | R[2]; self.srcc = R[3]
            if '16x16x32' in mn or '16x16x16' in mn: self.passes = 4
            elif '32x32x16' in mn or '32x32x8' in mn or '16x16x4_f32' in mn: self.passes = 8
            else: raise ValueError('unknown mfma ' + mn)
        elif mn.startswith('v_'):
            self.cls = 'valu'
            self.dpp = ('_dpp' in mn) or any(f.startswith(('row_', 'quad_perm', 'wave_')) for f in fl)
            if mn.startswith('v_cmpx'): raise ValueError('no cmpx')
            if mn.startswith(('v_add_co', 'v_sub_co', 'v_subrev_co', 'v_addc_co', 'v_subb_co', 'v_subbrev_co', 'v_mad_u64_u32', 'v_div_scale')):
                self.wr = R[0] | R[1]; self.rd = U(R[2:])
            elif mn.startswith(('v_permlane16_swap', 'v_permlane32_swap', 'v_swap')):
                self.wr = R[0] | R[1]; self.rd = R[0] | R[1]
            elif mn.startswith('v_nop'):
                pass
            else:
                self.wr = R[0]; self.rd = U(R[1:])
                if mn.startswith(('v_fmac', 'v_dot2c', 'v_pk_fmac', 'v_writelane', 'v_fma_mixlo', 'v_fma_mixhi')) or self.dpp or 'sdwa' in mn: self.rd |= R[0]
        elif mn.startswith('ds_'):
            self.cls = 'ds'
            if mn.startswith(('ds_read', 'ds_bpermute', 'ds_permute', 'ds_swizzle')) or '_rtn' in mn:
                self.wr = R[0]; self.rd = U(R[1:])
            else: self.rd = U(R)
        elif mn.startswith('buffer_'):
            self.cls = 'vmem'
            if mn.startswith(('buffer_inv', 'buffer_wbl2')): pass
            elif mn.startswith('buffer_load'):
                if 'lds' in fl: self.rd = U(R) | {('s', 124)}
                else: self.wr = R[0]; self.rd = U(R[1:])
            else:
                self.rd = U(R)
                if 'atomic' in mn and 'sc0' in fl: self.wr = R[0]
                if mn.endswith(('x3', 'x4')): self.wide_store_data = R[0]
        elif mn.startswith('global_'):
            self.cls = 'vmem'
            if mn.startswith('global_load_lds'): self.rd = U(R) | {('s', 124)}
            elif mn.startswith('global_load'): self.wr = R[0]; self.rd = U(R[1:])
            elif 'atomic' in mn and 'sc0' in fl: self.wr = R[0]; self.rd = U(R[1:])
            else:
                self.rd = U(R)
                if mn.endswith(('x3', 'x4')): self.wide_store_data = R[1]
        elif mn.startswith(('s_load', 's_buffer_load', 's_memtime', 's_memrealtime', 's_atomic')):
            self.cls = 'smem'; self.wr = R[0]; self.rd = U(R[1:])
        elif mn.startswith('s_'):
            self.cls = 'salu'
            if mn.startswith(('s_branch', 's_cbranch')): self.target = ops[0]
            if mn == 's_nop': self.states = int(ops[0], 0) + 1
            if mn.startswith(SALU_NODST): self.rd = U(R)
            else:
                self.wr = R[0]; self.rd = U(R[1:])
                if mn.endswith('saveexec_b64'): self.wr |= regs_of('exec'); self.rd |= regs_of('exec')
                if mn.startswith(('s_addk', 's_mulk', 's_cmov')): self.rd |= R[0]
        else:
            raise ValueError('cannot parse: ' + text)

def need_states(p, c):
    n = 0
    vw = {r for r in p.wr if r[0] in 'va'}
    sw = {r for r in p.wr if r[0] == 's'}
    if p.cls == 'valu':
        isdot = p.mn.startswith('v_dot')
        if c.cls == 'mfma' and vw & c.rd: n = max(n, 3 if isdot else 2)
        if isdot and (vw & (c.rd | c.wr)):
            same_c = (c.mn == p.mn) and not (vw & set().union(*[regs_of(o) for o in c.ops[1:3]]))
            if not same_c: n = max(n, 3)
        if p.mn.startswith(TRANS) and vw & c.rd and not c.mn.startswith(TRANS): n = max(n, 1)
        if c.cls == 'valu':
            if c.dpp and vw & c.rd: n = max(n, 2)
            if c.mn.startswith(('v_readlane', 'v_readfirstlane')) and vw & c.rd: n = max(n, 1)
            if c.mn.startswith('v_permlane') and vw & c.rd: n = max(n, 2)
            if sw & c.rd:
                n = max(n, 4 if c.mn.startswith(('v_readlane', 'v_writelane')) else 2)
            if ('op_sel' in p.flags and not p.mn.startswith(('v_pk_', 'v_fma_mix_f32'))) or 'sdwa' in p.mn or p.mn.startswith(('v_fma_mixlo', 'v_fma_mixhi')):
                if vw & (c.rd | c.wr): n = max(n, 1)
        if c.cls in ('vmem',) and sw & c.rd: n = max(n, 5)
        if c.cls == 'mfma' and sw & c.rd: n = max(n, 2)
    elif p.cls == 'mfma':
        P = p.passes
        if c.cls == 'mfma':
            if vw & c.srcab: n = max(n, {4: 8, 8: 12}[P])
            if vw & c.srcc:
                if not (c.srcc == vw and c.passes == P): n = max(n, {4: 6, 8: 10}[P])
        elif c.cls in ('valu', 'vmem', 'ds'):
            if vw & (c.rd | c.wr): n = max(n, {4: 8, 8: 12}[P])
            if c.cls == 'valu' and p.srcc & c.wr: n = max(n, {4: 3, 8: 7}[P])
    elif p.cls == 'vmem':
        if p.wide_store_data & c.wr: n = max(n, 2 if c.cls in ('valu', 'mfma') else 1)
    elif p.cls == 'salu':
        if ('s', 124) in p.wr and ('s', 124) in c.rd and c.cls in ('vmem', 'ds'): n = max(n, 1)
    return n

class Kern:
    def __init__(self, name, shares=None):
        self.name = name; self.ins = []; self._opt = False; self.shares = shares
        self.maxv = -1; self.maxa = -1; self.maxs = -1
    def __call__(self, text):
        for line in text.split('\n'):
            if line.strip(): self.ins.append(Ins(line.strip(), self._opt))
    def optional(self, on): self._opt = on
    def _waitcnt_pass(self):
        out = []; vm = []; lg = []; smem = set()
        for i in self.ins:
            if i.cls in ('label', 'dir'):
                out.append(i); continue
            if i.mn == 's_waitcnt':
                m = re.search(r'vmcnt\((\d+)\)', i.text)
                if m:
                    n = int(m.group(1))
                    while vm and sum(1 for (r, o) in vm[1:] if not o or i.opt) >= n:
                        vm.pop(0)
                m = re.search(r'lgkmcnt\((\d+)\)', i.text)
                if m:
                    n = int(m.group(1))
                    if n == 0: lg = []; smem = set()
                    elif not smem:
                        while lg and sum(1 for (r, o) in lg[1:] if not o or i.opt) >= n: lg.pop(0)
                out.append(i); continue
            touch = i.rd | i.wr
            w = []
            idx = -1
            for k, (regs, opt) in enumerate(vm):
                if regs & touch: idx = k
            if idx >= 0:
                n = sum(1 for (r, o) in vm[idx+1:] if not o or i.opt)
                n = min(n, 63)
                w.append(f'vmcnt({n})'); vm = vm[idx+1:]
            if smem & touch:
                w.append('lgkmcnt(0)'); lg = []; smem = set()
            else:
                idx = -1
                for k, (regs, opt) in enumerate(lg):
                    if regs & touch: idx = k
                if idx >= 0:
                    n = sum(1 for (r, o) in lg[idx+1:] if not o or i.opt)
                    if smem: n = 0; smem = set(); lg = []
                    else: lg = lg[idx+1:]
                    w.append(f'lgkmcnt({min(n, 15)})')
            if w: out.append(Ins('s_waitcnt ' + ' '.join(w), i.opt))
            out.append(i)
            if i.cls == 'vmem': vm.append((set(i.wr), i.opt))
            elif i.cls == 'ds': lg.append((set(i.wr), i.opt))
            elif i.cls == 'smem': smem |= i.wr
            if i.mn == 's_endpgm': vm = []; lg = []; smem = set()
        self.ins = out
    def _hazard_pass(self):
        W = 24
        saved = {}
        for rep in range(2):
            out = []; hist = []
            for i in self.ins:
                if i.cls == 'label':
                    hist = hist + [[p, d] for p, d in saved.get(i.label, [])]
                    out.append(i); continue
                if i.cls == 'dir':
                    out.append(i); continue
                need = 0
                for p, d in hist:
                    need = max(need, need_states(p, i) - d)
                if need > 0 and rep == 1:
                    out.append(Ins(f's_nop {need-1}', i.opt))
                    for h in hist: h[1] += need
                out.append(i)
                for h in hist: h[1] += i.states
                hist = [h for h in hist if h[1] < W]
                hist.append([i, 0])
                if i.target is not None and rep == 0:
                    saved.setdefault(i.target, []).extend([(p, d) for p, d in hist])
                if i.mn in ('s_endpgm', 's_branch'): hist = []
            if rep == 1: self.ins = out
    def finalize(self):
        self._waitcnt_pass(); self._hazard_pass()
        for i in self.ins:
            for k, n in (i.rd | i.wr):
                if k == 'v': self.maxv = max(self.maxv, n)
                elif k == 'a': self.maxa = max(self.maxa, n)
                elif k == 's' and n < 102: self.maxs = max(self.maxs, n)
        if self.shares is not None:
            o = self.shares
            assert o.maxv >= 0, 'finalize the shared kernel first'
            self.maxv = max(self.maxv, o.maxv); self.maxa = max(self.maxa, o.maxa); self.maxs = max(self.maxs, o.maxs)
            assert ((self.maxv + 4) // 4) == ((o.maxv + 4) // 4) or o.maxa < 0
        body = '\n'.join(('' if i.cls == 'label' else ' ') + i.text for i in self.ins)
        name = self.name
        text = f'.globl {name}\n.p2align 8\n.type {name},@function\n{name}:\n{body}\n'
        acc = max(4, ((self.maxv + 1 + 3) // 4) * 4)
        nfv = acc + self.maxa + 1 if self.maxa >= 0 else self.maxv + 1
        assert acc <= 256 and nfv <= 512, (acc, nfv)
        desc = (f'.amdhsa_kernel {name}\n  .amdhsa_next_free_vgpr {max(nfv,1)}\n  .amdhsa_next_free_sgpr {max(self.maxs+1, 8)}\n'
                f'  .amdhsa_accum_offset {acc}\n  .amdhsa_group_segment_fixed_size 0\n  .amdhsa_kernarg_size 72\n'
                f'  .amdhsa_user_sgpr_count 2\n  .amdhsa_user_sgpr_kernarg_segment_ptr 1\n  .amdhsa_system_sgpr_workgroup_id_x 1\n'
                f'  .amdhsa_float_denorm_mode_32 3\n.end_amdhsa_kernel\n')
        return text, desc

def write_module(path, launches, kerns, header=''):
    s = header
    for (n, g, b, l) in launches:
        s += f'; @launch kernel={n} grid=({g},1,1) block=({b},1,1) lds={l}\n'
    s += '.amdgcn_target "amdgcn-amd-amdhsa--gfx950"\n.text\n'
    fin = [k.finalize() for k in kerns]
    for t, d in fin: s += t
    s += '.section .rodata,"a"\n'
    for t, d in fin: s += '.p2align 6\n' + d
    open(path, 'w').write(s)
    return fin
```

```python
import numpy as np
S, D, H, DH = 2048, 576, 32, 18
XH_SZ = 0x240000
XH0, XH1, XH2, XH3, X3T, O1, O2, WT = [i*XH_SZ for i in range(8)]
WQ = 0x1200000; WOH = 0x1400000; WOT = 0x14C0000; GT = 0x1580000; FT = 0x1640000
SS0 = 0x16A0000; SS2 = 0x16A2000; KVP1 = 0x1700000; KVP2 = 0x1800000
WS_END = 0x2000000
WQ_HP = 126*1024
T0S = [(9*cb+1)//2 for cb in range(8)]; NTS = [5, 4]*4

def bf(x):
    x = np.ascontiguousarray(x, dtype=np.float32)
    u = x.view(np.uint32)
    r = ((u + 0x7FFF + ((u >> 16) & 1)) & 0xFFFF0000).astype(np.uint32)
    return r.view(np.float32)
def u16f(u):
    return (np.asarray(u).view(np.uint16).astype(np.uint32) << 16).view(np.float32)
def Fmat():
    d = np.arange(D)[:, None]; j = np.arange(288)[None, :]
    F = np.zeros((D, D))
    F[:, 0::2] = np.sqrt(2/D)*np.cos(2*np.pi*d*j/D); F[:, 1::2] = -np.sqrt(2/D)*np.sin(2*np.pi*d*j/D)
    F[:, 0] = (-1.0)**np.arange(D)/24; F[:, 1] = 1/24
    return F
def unfrag(buf16, rows):
    a = np.asarray(buf16).reshape(rows//16, 18, 4, 16, 8)
    return a.transpose(0, 3, 1, 2, 4).reshape(rows, 576)
def tile_cols(T):
    i = np.arange(16)
    return 32*(T//2) + 8*(i//4) + 4*(T % 2) + i % 4
def eslot():
    E = np.zeros((18, 4, 8), dtype=int)
    for k in range(18):
        for g in range(4):
            for u in range(8):
                if k < 16: E[k, g, u] = 18*(2*k + u//4) + 4*g + u % 4
                else:
                    hp = 8*(k-16) + 2*g + u//4; r = u % 4
                    E[k, g, u] = 18*(2*hp + r//2) + 16 + r % 2
    return E
def wq_cols(hp):
    C = -np.ones((7, 16), dtype=int)
    for hl in range(2):
        h = 2*hp + hl
        C[hl] = 576 + 18*h + np.arange(16); C[2+hl] = 1152 + 18*h + np.arange(16); C[5+hl] = 18*h + np.arange(16)
        for x in range(2):
            C[4, 4*hl + x] = 1152 + 18*h + 16 + x
            C[4, 8 + 4*hl + x] = 576 + 18*h + 16 + x
            C[4, 2 + 4*(2*hl + x)] = 18*h + 16 + x
    return C
```

```python
import struct, sys
from asmlib import *
from layout import *

def f2u(x): return struct.unpack('<I', struct.pack('<f', x))[0]
def fl(x): return '0x%08x' % f2u(x)
def vr(b, n=4): return f'v[{b}:{b+n-1}]'
def ar(b, n=4): return f'a[{b}:{b+n-1}]'
MF = 'v_mfma_f32_16x16x32_bf16'

def srd(k, d, lo, hi, nbytes):
    k(f"s_mov_b32 s{d}, s{lo}\ns_mov_b32 s{d+1}, s{hi}\ns_mov_b32 s{d+2}, {hex(nbytes)}\ns_mov_b32 s{d+3}, 0x20000")

def lane_setup(k):
    k("""v_lshrrev_b32 v1, 6, v0
v_readfirstlane_b32 s20, v1
v_and_b32 v1, 63, v0
v_and_b32 v2, 15, v0
v_bfe_u32 v3, v0, 4, 2
v_lshlrev_b32 v4, 4, v1""")

XB = 16
def gemm_tiles(k, tag, sym, swap, epilogue, pre_tile=None, nbuf=6, WB=88, ACC=112):
    nk = 9 if sym else 18
    for slot in range(5):
        if slot == 0:
            k(f"s_cmp_eq_u32 s21, 0\ns_cbranch_scc1 L_{tag}_skip0")
            k.optional(True)
        if pre_tile: pre_tile(k, slot, 0)
        lo = ACC + 8*(slot % 2); hi = lo + 4
        seq = list(range(nk))
        def rd(kk):
            b = WB + 4*(kk % nbuf)
            k(f"ds_read_b128 {vr(b)}, v4 offset:{(slot*nk + kk)*1024 % 65536}" if (slot*nk + kk)*1024 < 65536 else
              f"ds_read_b128 {vr(b)}, v5 offset:{(slot*nk + kk)*1024 - 65536}")
        ahead = nbuf - 1
        issued = 0
        for kk in seq:
            while issued < nk and issued <= kk + ahead - 1:
                if pre_tile and issued > 0: pre_tile(k, slot, issued)
                rd(issued); issued += 1
            w = vr(WB + 4*(kk % nbuf))
            for (acc, xk) in ([(lo, kk), (hi, kk+9)] if sym else [(lo, kk)]):
                c = '0' if kk == 0 else vr(acc)
                x = vr(XB + 4*xk)
                k(f"{MF} {vr(acc)}, {x}, {w}, {c}" if swap else f"{MF} {vr(acc)}, {w}, {x}, {c}")
        epilogue(k, slot, lo, hi)
        if slot == 0:
            k.optional(False)
            k(f"L_{tag}_skip0:")

def tile_index(k, slot, dst):
    k(f"s_add_u32 s{dst}, s22, {4 if slot == 0 else slot-1}")

def frag_store_off(k, tdst, dst):
    k(f"""s_lshr_b32 s{dst}, s{tdst}, 1
s_lshl_b32 s{dst}, s{dst}, 10
s_and_b32 s3, s{tdst}, 1
s_lshl_b32 s3, s3, 3
s_add_u32 s{dst}, s{dst}, s3""")

def cb_setup(k, scb):
    k(f"""s_and_b32 s21, s{scb}, 1
s_xor_b32 s21, s21, 1
s_mul_i32 s22, s{scb}, 9
s_add_u32 s22, s22, 1
s_lshr_b32 s22, s22, 1""")

SC = (2/576)**0.5
def role_P1(k):
    tag = 'p1'
    k("""s_load_dwordx2 s[4:5], s[0:1], 64
s_load_dwordx2 s[6:7], s[0:1], 0""")
    lane_setup(k)
    k("""s_and_b32 s23, s2, 7
s_lshl_b32 s23, s23, 2
s_lshr_b32 s3, s2, 3
s_and_b32 s24, s3, 3
s_add_u32 s23, s23, s24
s_lshr_b32 s24, s3, 2""")
    cb_setup(k, 24)
    k("""s_lshl_b32 s25, s23, 2
s_add_u32 s25, s25, s20          ; s-tile
s_mul_i32 s26, s25, 18432
v_mul_u32_u24 v6, 1152, v2
v_lshl_add_u32 v6, v3, 4, v6
s_waitcnt lgkmcnt(0)""")
    srd(k, 8, 4, 5, WS_END); srd(k, 12, 6, 7, XH_SZ)
    for kk in range(18):
        k(f"buffer_load_dwordx4 {vr(XB+4*kk)}, v6, s[12:15], s26 offen offset:{64*kk}")
    k(f"""v_mov_b32 v8, -1
v_mov_b32 v9, -1
v_mov_b32 v10, -1
v_mov_b32 v11, -1
v_lshlrev_b32 v7, 4, v0
s_lshl_b32 s27, s2, 12
s_add_u32 s27, s27, {hex(KVP1)}
buffer_store_dwordx4 v[8:11], v7, s[8:11], s27 offen
s_add_u32 s27, s27, {hex(KVP2-KVP1)}
buffer_store_dwordx4 v[8:11], v7, s[8:11], s27 offen
v_mov_b32 v12, 0
v_lshlrev_b32 v13, 2, v0
s_lshl_b32 s27, s2, 10
s_add_u32 s27, s27, {hex(SS2)}
s_cmp_ge_u32 s2, 8
s_cbranch_scc1 L_p1_nozero""")
    k.optional(True)
    k("buffer_store_dword v12, v13, s[8:11], s27 offen")
    k.optional(False)
    k("L_p1_nozero:")
    k(f"""s_add_u32 s28, s22, s20
s_mov_b32 s29, 0
s_mov_b32 s30, 1
s_add_u32 s31, s20, 1
s_mov_b32 s34, 0
v_lshrrev_b32 v8, 2, v2
v_lshlrev_b32 v8, 3, v8
v_and_b32 v9, 3, v2
v_add_u32 v8, v8, v9              ; 8*(i>>2) + (i&3)
v_lshlrev_b32 v9, 3, v3
v_cvt_f32_u32 v9, v9              ; 8g
L_p1_trig_pass:
s_lshr_b32 s3, s28, 1
s_lshl_b32 s3, s3, 5
s_and_b32 s32, s28, 1
s_lshl_b32 s32, s32, 2
s_add_u32 s3, s3, s32
v_add_u32 v10, s3, v8             ; c
v_lshrrev_b32 v11, 1, v10         ; j
v_and_b32 v12, 1, v10
v_cvt_f32_u32 v12, v12
v_mul_f32 v12, 0.25, v12          ; phase
v_cvt_f32_u32 v11, v11
v_mul_f32 v11, {fl(1/576)}, v11   ; f = j/576
v_cmp_eq_u32 vcc, 0, v10
v_cndmask_b32 v11, v11, 0.5, vcc
v_cmp_eq_u32 vcc, 1, v10
v_cndmask_b32 v12, v12, 0, vcc
s_mul_i32 s33, s31, 9
s_mul_i32 s35, s28, 9
L_p1_trig:
s_lshl_b32 s3, s29, 5
v_cvt_f32_u32 v13, s3
v_add_f32 v13, v13, v9            ; d0
v_fma_f32 v13, v13, v11, v12
v_fract_f32 v13, v13""".replace("v_mul_f32 v12, 0.25, v12", f"v_mul_f32 v12, {fl(0.25)}, v12"))
    T = 88
    for u in range(8):
        if u == 0: k(f"v_cos_f32 v{T}, v13")
        else: k(f"v_fmamk_f32 v{T+u}, v11, {fl(float(u))}, v13\nv_cos_f32 v{T+u}, v{T+u}")
    for q in range(4): k(f"v_cvt_pk_bf16_f32 v{T+8+q}, v{T+2*q}, v{T+2*q+1}")
    k(f"""s_add_u32 s3, s33, s29
s_lshl_b32 s3, s3, 10
v_add_u32 v14, s3, v4
ds_write_b128 v14, {vr(T+8)}
s_cmp_lg_u32 s23, 0
s_cbranch_scc1 L_p1_noft
s_add_u32 s3, s35, s29
s_lshl_b32 s3, s3, 10
s_add_u32 s3, s3, {hex(FT)}""")
    k.optional(True)
    k(f"buffer_store_dwordx4 {vr(T+8)}, v4, s[8:11], s3 offen\ns_nop 1")
    k.optional(False)
    k(f"""L_p1_noft:
s_add_u32 s29, s29, s30
s_cmp_lt_u32 s29, 9
s_cbranch_scc1 L_p1_trig
s_add_u32 s34, s34, 1
s_cmp_gt_u32 s34, s21
s_cbranch_scc1 L_p1_trig_done
s_add_u32 s28, s22, 4
s_mov_b32 s29, s20
s_mov_b32 s30, 4
s_mov_b32 s31, 0
s_branch L_p1_trig_pass
L_p1_trig_done:
s_waitcnt vmcnt(0) lgkmcnt(0)
s_barrier""")
    k(f"""s_cmp_eq_u32 s24, 0
s_mov_b32 s36, {fl(SC)}
s_cselect_b32 s3, {fl(1/24)}, s36
v_mov_b32 v8, s36
v_mov_b32 v9, s3
v_cmp_eq_u32 vcc, 0, v3
v_cndmask_b32 v8, v8, v9, vcc
s_add_u32 s37, s26, {hex(XH0)}""")
    def epi(k, slot, lo, hi):
        tile_index(k, slot, 38); frag_store_off(k, 38, 39)
        k("s_add_u32 s39, s39, s37")
        E = 128 + 8*(slot % 2)
        for r in range(4):
            k(f"v_{'add' if r < 2 else 'sub'}_f32 v{E+r}, v{lo+r}, v{hi+r}")
        for r in range(4):
            k(f"v_mul_f32 v{E+r}, {'v8' if (slot == 1 and r < 2) else 's36'}, v{E+r}")
        k(f"v_cvt_pk_bf16_f32 v{E+4}, v{E}, v{E+1}\nv_cvt_pk_bf16_f32 v{E+5}, v{E+2}, v{E+3}")
        k(f"buffer_store_dwordx2 {vr(E+4,2)}, v4, s[8:11], s39 offen")
    gemm_tiles(k, tag, True, False, epi)
    k(f"""s_cmp_lg_u32 s24, 1
s_cbranch_scc1 L_p1_end
v_mov_b32 v88, 0x3f803f80
v_mov_b32 v89, 0x3f803f80
v_mov_b32 v90, 0x3f803f80
v_mov_b32 v91, 0x3f803f80""")
    for kk in range(18):
        x = vr(XB+4*kk)
        k(f"{MF} v[112:115], v[88:91], {x}, {'0' if kk == 0 else 'v[112:115]'}")
        k(f"{MF} v[116:119], {x}, {x}, {'0' if kk == 0 else 'v[116:119]'}")
    k(f"""v_and_b32 v10, 3, v2
v_cmp_eq_u32 vcc, 1, v10
v_cndmask_b32 v11, v116, v117, vcc
v_cmp_eq_u32 vcc, 2, v10
v_cndmask_b32 v11, v11, v118, vcc
v_cmp_eq_u32 vcc, 3, v10
v_cndmask_b32 v11, v11, v119, vcc
v_mul_f32 v12, v112, v112
v_mul_f32 v12, {fl(1/576)}, v12
v_sub_f32 v11, v11, v12
v_max_f32 v11, 0, v11
v_lshrrev_b32 v10, 2, v2
v_cmp_eq_u32 vcc, v10, v3
v_lshlrev_b32 v13, 2, v2
s_lshl_b32 s3, s25, 6
s_add_u32 s3, s3, {hex(SS0)}
s_and_saveexec_b64 s[40:41], vcc
buffer_store_dword v11, v13, s[8:11], s3 offen
L_p1_end:
s_endpgm""")

def role_T1(k, first):
    k("""s_load_dwordx2 s[4:5], s[0:1], 64
s_load_dwordx4 s[24:27], s[0:1], 8""")
    lane_setup(k)
    k(f"""s_sub_u32 s21, s2, {first}
s_lshl_b32 s21, s21, 2
s_add_u32 s21, s21, s20            ; job
s_mul_hi_u32 s22, s21, {hex((1<<32)//9+1)}   ; job/9
s_mul_i32 s3, s22, 9
s_sub_u32 s23, s21, s3             ; x
s_and_b32 s28, s22, 3              ; w
s_lshr_b32 s29, s22, 2             ; b0/4  (0..7)
s_waitcnt lgkmcnt(0)""")
    srd(k, 8, 4, 5, WS_END); srd(k, 12, 24, 25, 2048*578); srd(k, 16, 26, 27, 2048*578)
    k(f"""v_lshrrev_b32 v5, 2, v2
v_and_b32 v6, 3, v2
v_lshl_add_u32 v5, v6, 6, v5
v_mul_u32_u24 v5, 578, v5
v_lshl_add_u32 v5, v3, 4, v5
s_lshl_b32 s30, s29, 8             ; 64*b0
s_lshl_b32 s3, s28, 4
s_add_u32 s30, s30, s3             ; + 16w
s_mul_i32 s30, s30, 578
s_lshl_b32 s3, s23, 6
s_add_u32 s30, s30, s3
s_add_u32 s30, s30, 2""")
    for blk in range(4):
        if blk == 2: k("s_add_u32 s30, s30, %d" % (8*578))
        off = (blk % 2)*4*578
        k(f"buffer_load_dwordx4 {vr(16+8*blk)}, v5, s[12:15], s30 offen offset:{off}")
        k(f"buffer_load_dwordx4 {vr(20+8*blk)}, v5, s[16:19], s30 offen offset:{off}")
    k("""v_and_b32 v6, 1, v2
v_lshlrev_b32 v6, 4, v6
v_mov_b32 v7, 0x3a00
v_lshlrev_b32 v6, v6, v7           ; value
v_lshrrev_b32 v7, 1, v2
v_lshlrev_b32 v8, 2, v3            ; 4g""")
    for nt in range(2):
        for q in range(4):
            k(f"v_add_u32 v9, {q - 8*nt}, v8\nv_cmp_eq_u32 vcc, v9, v7\nv_cndmask_b32 v{48+4*nt+q}, 0, v6, vcc")
    k(f"""s_lshl_b32 s3, s23, 5
s_add_u32 s3, s3, 1
v_add_u32 v10, s3, v2              ; k for nt=0
v_add_u32 v11, 16, v10             ; k for nt=1
v_cmp_eq_u32 vcc, 288, v11
v_cndmask_b32 v11, v11, 0, vcc
v_lshlrev_b32 v10, 13, v10
v_lshlrev_b32 v11, 13, v11
v_lshl_add_u32 v10, v3, 4, v10
v_lshl_add_u32 v11, v3, 4, v11
s_lshl_b32 s31, s28, 11
s_lshl_b32 s3, s29, 8
s_add_u32 s31, s31, s3
s_add_u32 s31, s31, {hex(WT)}""".replace("v_cmp_eq_u32 vcc, 288, v11", "v_cmp_eq_u32 vcc, 0x120, v11"))
    for blk in range(4):
        for nt in range(2):
            a = 56 + 16*((2*blk+nt) % 2)
            k(f"{MF} {vr(a)}, {vr(16+8*blk)}, {vr(48+4*nt)}, 0")
            k(f"{MF} {vr(a+4)}, {vr(20+8*blk)}, {vr(48+4*nt)}, 0")
            for r in range(4): k(f"v_cvt_pk_bf16_f32 v{a+8+r}, v{a+r}, v{a+4+r}")
            k(f"buffer_store_dwordx4 {vr(a+8)}, v{10+nt}, s[8:11], s31 offen offset:{64*blk}")
    k("s_endpgm")


def role_P2(k):
    RAW, SSV, WTV = 8, 16, 24
    C1, S1, N1 = 32, 40, 48
    TW1, TW2 = 56, 72
    XR, XI = 88, 96
    DAT = 104
    F2 = 136
    F4 = 160
    ACC = 208
    PK = 224
    TMP = 232
    L_X1, L_F1, L_F2, L_U = 0, 8192, 32768, 38912
    k("s_load_dwordx2 s[4:5], s[0:1], 64")
    lane_setup(k)
    k(f"""s_and_b32 s3, s2, 7
s_lshr_b32 s21, s2, 3
s_and_b32 s22, s21, 3              ; r
s_lshr_b32 s21, s21, 2
s_lshl_b32 s21, s21, 3
s_add_u32 s21, s21, s3             ; q
s_lshl_b32 s23, s21, 2
s_add_u32 s23, s23, s22            ; j
s_lshl_b32 s24, s21, 8
s_lshl_b32 s3, s22, 2
s_add_u32 s24, s24, s3
s_lshr_b32 s25, s20, 1             ; j2
s_and_b32 s26, s20, 1              ; t
s_lshl_b32 s27, s25, 6
s_add_u32 s27, s27, s26
s_mul_i32 s27, s27, 18432
s_add_u32 s27, s27, s24
s_add_u32 s44, s27, s40
v_mul_u32_u24 v5, {8*18432}, v3
v_lshl_add_u32 v5, v2, 4, v5
v_lshlrev_b32 v6, 9, v3
v_lshl_add_u32 v6, v2, 2, v6
s_lshl_b32 s28, s25, 12
s_lshl_b32 s3, s26, 6
s_add_u32 s28, s28, s3
s_add_u32 s28, s28, s42
s_lshl_b32 s29, s23, 13
s_lshl_b32 s3, s20, 11
s_add_u32 s29, s29, s3
s_add_u32 s29, s29, {hex(WT)}""")
    for u in range(1, 8): k(f"s_add_u32 s{44+u}, s44, {(32*(u//4) + 2*(u % 4))*18432}")
    k("s_waitcnt lgkmcnt(0)")
    srd(k, 8, 4, 5, WS_END)
    for u in range(8): k(f"buffer_load_dword v{RAW+u}, v5, s[8:11], s{44+u} offen")
    for u in range(8): k(f"buffer_load_dword v{SSV+u}, v6, s[8:11], s28 offen offset:{(512*(u//4) + 32*(u % 4))*4}")
    for t in range(2): k(f"buffer_load_dwordx4 {vr(WTV+4*t)}, v4, s[8:11], s29 offen offset:{1024*t}")
    FA, BA, G4 = TMP+8, TMP+9, TMP+10
    k(f"""s_lshl_b32 s3, s20, 4
v_add_u32 v{FA}, s3, v2
v_cvt_f32_u32 v{FA}, v{FA}
v_mul_f32 v{FA}, {fl(1/64)}, v{FA}      ; a'/64
v_lshlrev_b32 v{G4}, 2, v3
v_cvt_f32_u32 v{G4}, v{G4}              ; 4g
v_mul_f32 v{BA}, v{FA}, v{G4}
s_mul_i32 s3, s20, 6144
v_add_u32 v7, s3, v4""")
    for ks in range(2):
        for q in range(4):
            for h in range(2):
                u = 2*q + h; cst = 32*ks + 16*(u//4) + u % 4
                k(f"v_fmamk_f32 v{TMP+h}, v{FA}, {fl(float(cst))}, v{BA}")
            k(f"""v_cos_f32 v{TMP+2}, v{TMP}
v_cos_f32 v{TMP+3}, v{TMP+1}
v_sin_f32 v{TMP+4}, v{TMP}
v_sin_f32 v{TMP+5}, v{TMP+1}
v_cvt_pk_bf16_f32 v{C1+4*ks+q}, v{TMP+2}, v{TMP+3}
v_cvt_pk_bf16_f32 v{S1+4*ks+q}, v{TMP+4}, v{TMP+5}
v_cvt_pk_bf16_f32 v{N1+4*ks+q}, -v{TMP+4}, -v{TMP+5}""")
        for kind, b in enumerate((C1, S1, N1)):
            k(f"ds_write_b128 v7, {vr(b+4*ks)} offset:{L_F1 + (kind*2+ks)*1024}")
    k(f"""s_lshl_b32 s3, s25, 4
v_add_u32 v{TMP+11}, s3, v2
v_cvt_f32_u32 v{TMP+11}, v{TMP+11}
v_mul_f32 v{TMP+11}, {fl(1/32)}, v{TMP+11}
s_lshl_b32 s3, s26, 4
v_cvt_f32_u32 v{TMP+12}, s3
v_add_f32 v{TMP+12}, v{TMP+12}, v{G4}
v_mul_f32 v{TMP+12}, v{TMP+12}, v{TMP+11}
s_lshl_b32 s3, s25, 10
s_lshl_b32 s30, s26, 3
s_add_u32 s3, s3, s30
v_add_u32 v7, s3, v4               ; j2*1024 + lane*16 + t*8""")
    for q in range(2):
        for h in range(2):
            k(f"v_fmamk_f32 v{TMP+h}, v{TMP+11}, {fl(float(2*q+h))}, v{TMP+12}")
        k(f"""v_cos_f32 v{TMP+2}, v{TMP}
v_cos_f32 v{TMP+3}, v{TMP+1}
v_sin_f32 v{TMP+4}, v{TMP}
v_sin_f32 v{TMP+5}, v{TMP+1}
v_cvt_pk_bf16_f32 v{PK+q}, v{TMP+2}, v{TMP+3}
v_cvt_pk_bf16_f32 v{PK+2+q}, v{TMP+4}, v{TMP+5}
v_cvt_pk_bf16_f32 v{PK+4+q}, -v{TMP+4}, -v{TMP+5}""")
    for kind in range(3): k(f"ds_write_b64 v7, {vr(PK+2*kind, 2)} offset:{L_F2 + kind*2048}")
    k(f"v_mul_f32 v{FA}, {fl(1/32)}, v{FA}\nv_mul_f32 v{BA}, {fl(1/32)}, v{BA}")
    for e in range(8):
        cst = 16*(e//4) + e % 4
        k(f"v_fmamk_f32 v{TMP+e%2}, v{FA}, {fl(float(cst))}, v{BA}\nv_cos_f32 v{TW1+e}, v{TMP+e%2}\nv_sin_f32 v{TW1+8+e}, v{TMP+e%2}")
    k(f"""s_lshl_b32 s3, s20, 4
v_cvt_f32_u32 v{TMP+12}, s3
v_add_f32 v{TMP+12}, v{TMP+12}, v{G4}     ; 16w + 4g
v_cvt_f32_u32 v{TMP+11}, v2""")
    for t in range(2):
        k(f"""v_add_f32 v{FA}, {fl(16.0*t)}, v{TMP+11}
v_mul_f32 v{FA}, {fl(1/2048)}, v{FA}
v_mul_f32 v{BA}, v{FA}, v{TMP+12}""")
        for r in range(4):
            e = 4*t + r
            k(f"v_fmamk_f32 v{TMP+e%2}, v{FA}, {fl(float(r))}, v{BA}\nv_cos_f32 v{TW2+e}, v{TMP+e%2}\nv_sin_f32 v{TW2+8+e}, v{TMP+e%2}")
    k(f"""s_cmp_eq_u32 s23, 0
s_cselect_b32 s31, 0, 0xffff0000
s_mov_b32 s32, {fl(1/576)}
v_mov_b32 v{TMP+15}, {fl(1e-5)}""")
    for u in range(8):
        k(f"v_fma_f32 v{SSV+u}, v{SSV+u}, s32, v{TMP+15}\nv_rsq_f32 v{SSV+u}, v{SSV+u}")
    for u in range(8):
        k(f"v_lshlrev_b32 v{XR+u}, 16, v{RAW+u}\nv_and_b32 v{XI+u}, s31, v{RAW+u}")
    for q in range(4):
        for h in range(2):
            u = 2*q+h
            k(f"v_mul_f32 v{TMP+h}, v{XR+u}, v{SSV+u}\nv_mul_f32 v{TMP+2+h}, v{XI+u}, v{SSV+u}")
        k(f"v_cvt_pk_bf16_f32 v{PK+q}, v{TMP}, v{TMP+1}\nv_cvt_pk_bf16_f32 v{PK+4+q}, v{TMP+2}, v{TMP+3}")
    k(f"""s_lshl_b32 s3, s20, 10
v_add_u32 v{TMP+14}, s3, v4
ds_write_b128 v{TMP+14}, {vr(PK)} offset:{L_X1}
ds_write_b128 v{TMP+14}, {vr(PK+4)} offset:{L_X1+4096}
s_waitcnt lgkmcnt(0)
s_barrier""")
    dat = lambda pl, ks, t: vr(DAT + 16*pl + 4*(2*ks+t))
    for t in range(2):
        for ks in range(2):
            for pl in range(2):
                k(f"ds_read_b128 {dat(pl, ks, t)}, v4 offset:{L_X1 + 4096*pl + 1024*(2*ks+t)}")
    for kind in range(3):
        for t in range(2): k(f"ds_read_b128 {vr(F2+8*kind+4*t)}, v4 offset:{L_F2 + kind*2048 + t*1024}")
    AR = lambda t: ACC + 4*t
    AI = lambda t: ACC + 8 + 4*t
    for t in range(2):
        for ks in range(2):
            k(f"{MF} {vr(AR(t))}, {dat(0,ks,t)}, {vr(C1+4*ks)}, {'0' if ks == 0 else vr(AR(t))}")
            k(f"{MF} {vr(AI(t))}, {dat(1,ks,t)}, {vr(C1+4*ks)}, {'0' if ks == 0 else vr(AI(t))}")
            k(f"{MF} {vr(AR(t))}, {dat(1,ks,t)}, {vr(S1+4*ks)}, {vr(AR(t))}")
            k(f"{MF} {vr(AI(t))}, {dat(0,ks,t)}, {vr(N1+4*ks)}, {vr(AI(t))}")
    k(f"s_mul_i32 s3, s25, 12288\nv_add_u32 v{TMP+14}, s3, v4")
    f4 = lambda mt, kind, ks: vr(F4 + 24*mt + 8*kind + 4*ks)
    for mt in range(2):
        for kind in range(3):
            for ks in range(2):
                k(f"ds_read_b128 {f4(mt,kind,ks)}, v{TMP+14} offset:{L_F1 + mt*6144 + (kind*2+ks)*1024}")
    def cmul(cr, ci, conj_tw, outs):
        for q in range(4):
            for h in range(2):
                e = 2*q + h; xr = ACC + e; xi = ACC + 8 + e
                c, s_ = cr(e), ci(e)
                k(f"v_mul_f32 v{TMP+h}, v{xr}, v{c}\nv_mul_f32 v{TMP+2+h}, v{xi}, v{c}")
                if conj_tw:
                    k(f"v_fmac_f32 v{TMP+h}, v{xi}, v{s_}\nv_fma_f32 v{TMP+2+h}, -v{xr}, v{s_}, v{TMP+2+h}")
                else:
                    k(f"v_fma_f32 v{TMP+h}, -v{xi}, v{s_}, v{TMP+h}\nv_fmac_f32 v{TMP+2+h}, v{xr}, v{s_}")
            k(f"v_cvt_pk_bf16_f32 v{PK+q}, v{TMP}, v{TMP+1}\nv_cvt_pk_bf16_f32 v{PK+4+q}, v{TMP+2}, v{TMP+3}")
    for e in range(8):
        k(f"v_lshlrev_b32 v{SSV+e}, 16, v{WTV+e}\nv_and_b32 v{WTV+e}, 0xffff0000, v{WTV+e}")
    cmul(lambda e: TW1+e, lambda e: TW1+8+e, True, None)
    C2 = lambda t: vr(F2+4*t); S2 = lambda t: vr(F2+8+4*t); N2 = lambda t: vr(F2+16+4*t)
    PR, PI = vr(PK), vr(PK+4)
    for t in range(2):
        k(f"{MF} {vr(AR(t))}, {C2(t)}, {PR}, 0\n{MF} {vr(AI(t))}, {C2(t)}, {PI}, 0")
        k(f"{MF} {vr(AR(t))}, {S2(t)}, {PI}, {vr(AR(t))}\n{MF} {vr(AI(t))}, {N2(t)}, {PR}, {vr(AI(t))}")
    cmul(lambda e: SSV+e, lambda e: WTV+e, False, None)
    for t in range(2):
        k(f"{MF} {vr(AR(t))}, {PR}, {C2(t)}, 0\n{MF} {vr(AI(t))}, {PI}, {C2(t)}, 0")
        k(f"{MF} {vr(AR(t))}, {PI}, {N2(t)}, {vr(AR(t))}\n{MF} {vr(AI(t))}, {PR}, {S2(t)}, {vr(AI(t))}")
    cmul(lambda e: TW2+e, lambda e: TW2+8+e, False, None)
    for pl in range(2):
        for t in range(2):
            k(f"ds_write_b64 v7, {vr(PK+4*pl+2*t, 2)} offset:{L_U + pl*4096 + t*2048}")
    k(f"""s_lshl_b32 s3, s26, 11
v_add_u32 v{TMP+14}, s3, v4
s_sub_u32 s33, s41, s40
s_waitcnt lgkmcnt(0)
s_barrier""")
    ud = lambda pl, ks: vr(DAT + 8*pl + 4*ks)
    for ks in range(2):
        for pl in range(2):
            k(f"ds_read_b128 {ud(pl,ks)}, v{TMP+14} offset:{L_U + pl*4096 + ks*1024}")
    for u in range(8): k(f"s_add_u32 s{44+u}, s{44+u}, s33")
    for mt in range(2):
        for ks in range(2):
            r_, i_ = vr(XR+4*mt), vr(XI+4*mt)
            k(f"{MF} {r_}, {f4(mt,0,ks)}, {ud(0,ks)}, {r_}\n{MF} {i_}, {f4(mt,0,ks)}, {ud(1,ks)}, {i_}")
            k(f"{MF} {r_}, {f4(mt,2,ks)}, {ud(1,ks)}, {r_}\n{MF} {i_}, {f4(mt,1,ks)}, {ud(0,ks)}, {i_}")
    k("s_or_b32 s31, s31, 0xffff")
    for u in range(8):
        k(f"v_cvt_pk_bf16_f32 v{PK+u}, v{XR+u}, v{XI+u}\nv_bfi_b32 v{PK+u}, s31, v{PK+u}, v{RAW+u}")
        k(f"buffer_store_dword v{PK+u}, v5, s[8:11], s{44+u} offen")
    k("s_endpgm")

def dma_weights(k, tag, nk, sbase):
    n0 = nk; n4 = 4*nk
    k(f"""s_lshl_b32 s43, s20, 10
s_cmp_eq_u32 s21, 0
s_cbranch_scc1 L_{tag}_dma0
s_add_u32 s3, s{sbase}, {4*nk*1024}
s_add_u32 s3, s3, s43
s_mov_b32 m0, s43""")
    k.optional(True)
    nfull = n0 // 4
    for m in range((n0 + 3)//4):
        if m == nfull:
            k(f"s_cmp_ge_u32 s20, {n0 - 4*nfull}\ns_cbranch_scc1 L_{tag}_dma0")
        k(f"buffer_load_dwordx4 v4, s[8:11], s3 offen lds\ns_add_u32 s3, s3, 4096\ns_add_u32 m0, m0, 4096")
    k.optional(False)
    k(f"""L_{tag}_dma0:
s_add_u32 s3, s{sbase}, s43
s_add_u32 m0, s43, {nk*1024}""")
    for m in range(nk):
        k(f"buffer_load_dwordx4 v4, s[8:11], s3 offen lds")
        if m < nk-1: k(f"s_add_u32 s3, s3, 4096\ns_add_u32 m0, m0, 4096")
    return nk

def role_J3(k, first):
    k("""s_load_dwordx2 s[4:5], s[0:1], 64
s_load_dwordx2 s[6:7], s[0:1], 32""")
    lane_setup(k)
    k(f"""s_sub_u32 s3, s2, {first}
s_and_b32 s24, s3, 7               ; cb
s_lshr_b32 s23, s3, 3              ; nb""")
    cb_setup(k, 24)
    k(f"""s_lshl_b32 s25, s23, 2
s_add_u32 s25, s25, s20            ; n-tile (0..107)
s_lshl_b32 s26, s25, 5
s_mul_i32 s27, s22, 9216
s_add_u32 s27, s27, {hex(FT)}
v_lshrrev_b32 v6, 2, v2
v_and_b32 v7, 3, v2
v_lshl_add_u32 v6, v6, 3, v7
v_mul_u32_u24 v6, 3456, v6
v_lshl_add_u32 v6, v3, 3, v6       ; + 8g bytes
s_waitcnt lgkmcnt(0)""")
    srd(k, 8, 4, 5, WS_END); srd(k, 12, 6, 7, 576*3456)
    dma_weights(k, 'j3', 9, 27)
    RB = 112
    for kk in range(18):
        for h in range(2):
            b = RB + 4*kk + 2*h
            k(f"buffer_load_dwordx2 {vr(b,2)}, v6, s[12:15], s26 offen")
            k(f"s_add_u32 s26, s26, {4*3456 if h == 0 else 28*3456}")
    k("""v_and_b32 v8, 1, v2
v_lshlrev_b32 v8, 4, v8
v_mov_b32 v9, 0x3f80
v_lshlrev_b32 v8, v8, v9
v_lshrrev_b32 v9, 1, v2            ; i>>1
v_lshlrev_b32 v10, 1, v3           ; 2g
v_cmp_eq_u32 vcc, v9, v10
v_cndmask_b32 v186, 0, v8, vcc
v_add_u32 v10, 1, v10
v_cmp_eq_u32 vcc, v9, v10
v_cndmask_b32 v187, 0, v8, vcc
v_mov_b32 v184, 0
v_mov_b32 v185, 0
v_mov_b32 v188, 0
v_mov_b32 v189, 0""")
    k(f"""s_lshl_b32 s3, s25, 4
v_add_u32 v8, s3, v2               ; n
s_mov_b32 s3, {hex((1<<32)//18+1)}
v_mul_hi_u32 v9, v8, s3            ; hh = n/18  (0..95)
v_mul_u32_u24 v10, 18, v9
v_sub_u32 v10, v8, v10             ; dd
v_lshrrev_b32 v11, 5, v9           ; which
v_and_b32 v12, 1, v9               ; hl
v_bfe_u32 v13, v9, 1, 4            ; hp
v_mul_u32_u24 v13, {WQ_HP//16}, v13   ; in 16-byte units
; main tiles: k: tile=hl ; v: 2+hl ; q: 90+hl (stride 2)
v_lshlrev_b32 v14, 1, v11
v_add_u32 v14, -2, v14             ; which=1 -> 0, 2 -> 2
v_cmp_eq_u32 vcc, 0, v11
v_mov_b32 v15, 90
v_cndmask_b32 v14, v14, v15, vcc
v_add_u32 v14, v14, v12
v_lshl_add_u32 v14, v14, 6, v10    ; tile*64 + slot (16B units)
v_mov_b32 v15, 5
v_cndmask_b32 v15, v15, 2, vcc     ; stride in fragments
; leftover: x = dd-16 ; v: 4hl + x ; k: 8 + 4hl + x ; q: 2 + 8hl + 4x
v_add_u32 v88, -16, v10
v_lshl_add_u32 v89, v12, 2, v88    ; 4hl + x
v_and_b32 v90, 1, v11
v_lshl_add_u32 v89, v90, 3, v89    ; + 8 if k
v_lshlrev_b32 v90, 3, v12
v_lshl_add_u32 v90, v88, 2, v90
v_add_u32 v90, 2, v90
v_cndmask_b32 v89, v89, v90, vcc
v_add_u32 v89, 256, v89            ; tile 4
v_cmp_lt_u32 vcc, 15, v10
v_cndmask_b32 v14, v14, v89, vcc
v_cndmask_b32 v15, v15, 5, vcc
v_add_u32 v14, v14, v13
v_lshl_add_u32 v14, v3, 4, v14     ; + g*16
v_lshlrev_b32 v14, 4, v14          ; bytes
v_lshlrev_b32 v15, 10, v15         ; stride bytes per kappa_c""".replace("v_add_u32 v89, 256, v89", "v_add_u32 v89, 0x100, v89").replace("v_mov_b32 v15, 90", "v_mov_b32 v15, 0x5a"))
    for kk in range(18):
        a = vr(RB + 4*kk); t = 96 + 8*(kk % 2)
        k(f"{MF} {vr(t)}, {a}, v[186:189], 0\n{MF} {vr(t+4)}, {a}, v[184:187], 0")
        if kk > 0:
            p = 96 + 8*((kk-1) % 2)
            for q in range(4): k(f"v_cvt_pk_bf16_f32 v{XB+4*(kk-1)+q}, v{p+2*q}, v{p+2*q+1}")
    for q in range(4): k(f"v_cvt_pk_bf16_f32 v{XB+4*17+q}, v{104+2*q}, v{104+2*q+1}")
    k(f"""s_waitcnt vmcnt(0)
s_barrier
s_cmp_eq_u32 s24, 0
s_mov_b32 s36, {fl(SC)}
s_cselect_b32 s3, {fl(1/24)}, s36
s_cselect_b32 s37, 0, s36
v_mov_b32 v8, s36
v_mov_b32 v9, s3
v_mov_b32 v10, s37
v_cmp_eq_u32 vcc, 0, v3
v_cndmask_b32 v9, v8, v9, vcc
v_cndmask_b32 v10, v8, v10, vcc""")
    def epi(k, slot, lo, hi):
        tile_index(k, slot, 38)
        E = 128 + 8*(slot % 2)
        k(f"""s_lshr_b32 s39, s38, 1
s_and_b32 s3, s38, 1
s_lshl_b32 s3, s3, 3
s_add_u32 s3, s3, {hex(WQ)}
v_mad_u32_u24 v{E+6}, v15, s39, v14""")
        for r in range(4):
            k(f"v_{'add' if r < 2 else 'sub'}_f32 v{E+r}, v{lo+r}, v{hi+r}")
        for r in range(4):
            k(f"v_mul_f32 v{E+r}, {('v9','v10')[r] if (slot == 1 and r < 2) else 's36'}, v{E+r}")
        k(f"v_cvt_pk_bf16_f32 v{E+4}, v{E}, v{E+1}\nv_cvt_pk_bf16_f32 v{E+5}, v{E+2}, v{E+3}")
        k(f"buffer_store_dwordx2 {vr(E+4,2)}, v{E+6}, s[8:11], s3 offen")
    gemm_tiles(k, 'j3', True, False, epi)
    k("s_endpgm")

def role_J2(k, first):
    k("""s_load_dwordx2 s[4:5], s[0:1], 64
s_load_dwordx2 s[6:7], s[0:1], 40""")
    lane_setup(k)
    k(f"""s_sub_u32 s3, s2, {first}
s_and_b32 s24, s3, 7               ; cb
s_lshr_b32 s23, s3, 3""")
    cb_setup(k, 24)
    k(f"""s_lshl_b32 s25, s23, 2
s_add_u32 s25, s25, s20            ; mt
s_mul_i32 s27, s22, 9216
s_add_u32 s27, s27, {hex(FT)}
s_mul_i32 s3, s25, 18
v_add_u32 v6, s3, v2
s_sub_u32 s3, s25, 32
s_lshr_b32 s28, s3, 1
s_lshl_b32 s28, s28, 3
s_and_b32 s3, s25, 1
s_add_u32 s28, s28, s3
v_lshrrev_b32 v7, 2, v2
v_lshl_add_u32 v7, v7, 1, s28      ; hp
v_bfe_u32 v8, v2, 1, 1
v_lshl_add_u32 v7, v7, 1, v8       ; head
v_mul_u32_u24 v7, 18, v7
v_and_b32 v8, 1, v2
v_add3_u32 v7, v7, v8, 16
s_cmp_ge_u32 s25, 32
s_cselect_b64 vcc, -1, 0
v_cndmask_b32 v6, v6, v7, vcc
v_mul_u32_u24 v6, 1152, v6
v_lshl_add_u32 v6, v3, 4, v6
s_waitcnt lgkmcnt(0)""")
    srd(k, 8, 4, 5, WS_END); srd(k, 12, 6, 7, 576*1152)
    dma_weights(k, 'j2', 9, 27)
    for kk in range(18):
        k(f"buffer_load_dwordx4 {vr(XB+4*kk)}, v6, s[12:15], 0 offen offset:{64*kk}")
    for slot in range(5):
        tile_index(k, slot, 38)
        k(f"s_lshr_b32 s3, s38, 1\ns_lshl_b32 s3, s3, 6\nbuffer_load_dwordx4 {vr(144+4*slot)}, v6, s[12:15], s3 offen")
    k(f"""v_and_b32 v8, 1, v2
v_lshlrev_b32 v8, 4, v8
v_mov_b32 v9, 0x3f80
v_lshlrev_b32 v8, v8, v9
v_lshrrev_b32 v9, 1, v2
v_lshlrev_b32 v10, 1, v3
v_cmp_eq_u32 vcc, v9, v10
v_cndmask_b32 v166, 0, v8, vcc
v_add_u32 v10, 1, v10
v_cmp_eq_u32 vcc, v9, v10
v_cndmask_b32 v167, 0, v8, vcc
v_mov_b32 v164, 0
v_mov_b32 v165, 0
v_mov_b32 v168, 0
v_mov_b32 v169, 0
; per-lane sign and scale: v11 = +-1 (hi half), v12 = generic scale, v13 = scale for tile T0
v_and_b32 v8, 2, v2
v_cmp_eq_u32 vcc, 0, v8
v_mov_b32 v9, -1.0
v_cndmask_b32 v11, v9, 1.0, vcc
s_cmp_eq_u32 s24, 0
s_mov_b32 s36, {fl(SC)}
s_cselect_b32 s3, {fl(1/24)}, s36
v_mov_b32 v12, s36
v_mov_b32 v13, s3
v_cmp_gt_u32 vcc, 2, v2
v_cndmask_b32 v13, v12, v13, vcc
s_lshr_b32 s37, s25, 1
s_lshl_b32 s37, s37, 10
s_and_b32 s3, s25, 1
s_lshl_b32 s3, s3, 3
s_add_u32 s37, s37, s3
s_waitcnt vmcnt(0)
s_barrier""")
    def epi(k, slot, lo, hi):
        tile_index(k, slot, 38)
        E = 128 + 8*(slot % 2)
        k(f"""s_mul_i32 s39, s38, 18432
s_add_u32 s39, s39, s37
s_add_u32 s33, s39, {hex(WOT)}
s_add_u32 s39, s39, {hex(WOH)}
s_bitcmp1_b32 s38, 0
s_cbranch_scc1 L_j2_odd{slot}
{MF} v[172:175], {vr(144+4*slot)}, v[166:169], 0
s_branch L_j2_j{slot}
L_j2_odd{slot}:
{MF} v[172:175], {vr(144+4*slot)}, v[164:167], 0
L_j2_j{slot}:""")
        for r in range(4): k(f"v_fma_f32 v{E+r}, v{hi+r}, v11, v{lo+r}")
        for r in range(4): k(f"v_mul_f32 v{E+r}, {'v13' if slot == 1 else 'v12'}, v{E+r}")
        k(f"v_cvt_pk_bf16_f32 v{E+4}, v{E}, v{E+1}\nv_cvt_pk_bf16_f32 v{E+5}, v{E+2}, v{E+3}")
        k(f"buffer_store_dwordx2 {vr(E+4,2)}, v4, s[8:11], s39 offen")
        k(f"v_cvt_pk_bf16_f32 v{E+6}, v172, v173\nv_cvt_pk_bf16_f32 v{E+7}, v174, v175")
        k(f"buffer_store_dwordx2 {vr(E+6,2)}, v4, s[8:11], s33 offen")
    gemm_tiles(k, 'j2', True, True, epi)
    k("s_endpgm")

def kernel2():
    k = Kern("k2_kernel")
    k(f"""s_cmp_ge_u32 s2, 576
s_cbranch_scc1 L_k2_exit
s_cmp_ge_u32 s2, 504
s_cbranch_scc1 L_k2_j2
s_cmp_ge_u32 s2, 288
s_cbranch_scc1 L_k2_j3
s_mov_b32 s40, {hex(XH0)}
s_mov_b32 s41, {hex(XH1)}
s_mov_b32 s42, {hex(SS0)}
L_p2_body:""")
    role_P2(k)
    k("L_k2_j3:")
    role_J3(k, 288)
    k("L_k2_j2:")
    role_J2(k, 504)
    k("L_k2_exit:\ns_endpgm")
    return k


LOG2E = 1.4426950408889634
def phi(k, dst, acc, rs, rs2, tmp, eps):
    k(f"""v_mul_f32 v{tmp}, v{acc}, v{rs2}
v_fma_f32 v{dst}, v{acc}, v{rs}, v{eps}
v_min_f32 v{tmp}, 0, v{tmp}
v_exp_f32 v{tmp}, v{tmp}
v_max_f32 v{dst}, v{dst}, v{eps}
v_add_f32 v{dst}, v{dst}, v{tmp}""")

def role_P3(k):
    A = lambda mt, kp: 16 + 8*kp + 4*mt
    ACC = lambda t, mt: 160 + 8*t + 4*mt
    RS, RS2, RL, RL2, EPS = 200, 208, 216, 218, 220
    TMP = 224; PKD = 232
    RED = 128*1024; FIN = RED + 16384
    k("s_load_dwordx2 s[4:5], s[0:1], 64")
    lane_setup(k)
    k(f"""s_and_b32 s3, s2, 7
s_lshr_b32 s21, s2, 3
s_lshr_b32 s22, s3, 1
s_lshl_b32 s22, s22, 2
s_and_b32 s23, s21, 3
s_add_u32 s22, s22, s23            ; rb
s_and_b32 s23, s3, 1
s_lshl_b32 s23, s23, 3
s_lshr_b32 s21, s21, 2
s_add_u32 s23, s23, s21            ; hp
s_lshl_b32 s24, s22, 3
s_lshl_b32 s3, s20, 1
s_add_u32 s24, s24, s3
s_mul_i32 s25, s24, 18432
s_add_u32 s26, s25, s40
s_add_u32 s27, s26, 18432
s_mul_i32 s28, s23, {WQ_HP}
s_lshl_b32 s43, s20, 10
s_add_u32 s28, s28, s43
s_add_u32 s28, s28, {hex(WQ)}
s_mov_b32 m0, s43
v_add_u32 v5, 0x10000, v4
s_waitcnt lgkmcnt(0)""")
    srd(k, 8, 4, 5, WS_END)
    ops = []
    m = 0
    def dma():
        nonlocal m
        k("buffer_load_dwordx4 v4, s[8:11], s28 offen lds\ns_add_u32 s28, s28, 4096\ns_add_u32 m0, m0, 4096")
        ops.append(('d', m)); m += 1
    for kp in range(18):
        off = (kp % 4)*1024
        k(f"buffer_load_dwordx4 {vr(A(0,kp))}, v4, s[8:11], s26 offen offset:{off}")
        k(f"buffer_load_dwordx4 {vr(A(1,kp))}, v4, s[8:11], s27 offen offset:{off}")
        ops.append(('a', kp)); ops.append(('a', kp))
        if kp % 4 == 3: k("s_add_u32 s26, s26, 4096\ns_add_u32 s27, s27, 4096")
        while 4*m < 5*(kp+1): dma()
    while m < 32: dma()
    k(f"""v_mov_b32 v8, 0
v_mov_b32 v9, 0
v_cmp_eq_u32 vcc, 0, v3
v_mov_b32 v10, 0xffff
v_cndmask_b32 v10, -1, v10, vcc
v_mov_b32 v{EPS}, {fl(1e-6)}""")
    def lds_rd(dst, f, va=('v4', 'v5')):
        o = f*1024
        k(f"ds_read_b128 {dst}, {va[0]} offset:{o}" if o < 65536 else f"ds_read_b128 {dst}, {va[1]} offset:{o-65536}")
    bounds = [0, 3, 6, 9, 12, 15, 17, 18]
    for ci in range(len(bounds)-1):
        k0, k1 = bounds[ci], bounds[ci+1]
        need = (5*k1 + 3)//4 - 1
        pos = ops.index(('d', need))
        k(f"s_waitcnt vmcnt({min(63, len(ops)-1-pos)})\ns_barrier")
        WBUF = lambda kp, t: ar(20*(kp % 2) + 4*t)
        for t in range(5): lds_rd(WBUF(k0, t), 5*k0 + t)
        for kp in range(k0, k1):
            if kp + 1 < k1:
                for t in range(5): lds_rd(WBUF(kp+1, t), 5*(kp+1) + t)
            dots = []
            for mt in range(2):
                for q in range(4):
                    r = A(mt, kp) + q
                    if kp == 0 and q == 0:
                        dots.append(f"v_and_b32 v{11+mt}, v10, v{r}\nv_dot2c_f32_bf16 v{8+mt}, v{11+mt}, v{11+mt}")
                    else: dots.append(f"v_dot2c_f32_bf16 v{8+mt}, v{r}, v{r}")
            n = 0
            for t in range(5):
                for mt in range(2):
                    k(f"{MF} {vr(ACC(t,mt))}, {vr(A(mt,kp))}, {WBUF(kp,t)}, {'0' if kp == 0 else vr(ACC(t,mt))}")
                    if n < 8: k(dots[n]); n += 1
    k("v_mov_b32 v11, 1.0")
    for mt in range(2):
        k(f"v_mfma_f32_16x16x4_f32 {vr(RS+4*mt)}, v{8+mt}, v11, 0")
        k(f"v_mfma_f32_16x16x4_f32 {vr(TMP+4*mt)}, v11, v{8+mt}, 0")
    k(f"s_mov_b32 s32, {fl(1/576)}\ns_mov_b32 s33, {fl(LOG2E)}\nv_mov_b32 v12, {fl(1e-5)}")
    for e in range(8):
        k(f"v_fma_f32 v{RS+e}, v{RS+e}, s32, v12\nv_rsq_f32 v{RS+e}, v{RS+e}")
    for mt in range(2):
        k(f"v_fma_f32 v{RL+mt}, v{TMP+4*mt}, s32, v12\nv_rsq_f32 v{RL+mt}, v{RL+mt}")
    for e in range(8): k(f"v_mul_f32 v{RS2+e}, s33, v{RS+e}")
    for mt in range(2): k(f"v_mul_f32 v{RL2+mt}, s33, v{RL+mt}")
    k("""v_cmp_lt_u32 s[46:47], 7, v2
v_and_b32 v13, 3, v2
v_cmp_eq_u32 s[48:49], 3, v13
v_cmp_gt_u32 s[50:51], 4, v2
v_cmp_eq_u32 s[52:53], 2, v3
v_cmp_eq_u32 s[54:55], 3, v3""")
    for t in range(5):
        for e in range(8):
            a = ACC(t, 0) + e
            if t < 2: phi(k, a, a, RS+e, RS2+e, TMP + e % 4, EPS)
            elif t < 4: k(f"v_mul_f32 v{a}, v{a}, v{RS+e}")
            else:
                phi(k, TMP+4 + e % 2, a, RS+e, RS2+e, TMP + e % 4, EPS)
                k(f"""v_mul_f32 v{a}, v{a}, v{RS+e}
v_cndmask_b32 v{a}, v{a}, v{TMP+4 + e % 2}, s[46:47]
v_cndmask_b32 v{a}, v{a}, 1.0, s[48:49]""")
        for q in range(4): k(f"v_cvt_pk_bf16_f32 v{PKD+4*t+q}, v{ACC(t,0)+2*q}, v{ACC(t,0)+2*q+1}")
    P = lambda t: vr(PKD+4*t)
    T00, T11, T0L, T1L, TL0, TL1, TLL = [160 + 4*i for i in range(7)]
    for d, a, b in ((T00,0,2), (T11,1,3), (T0L,0,4), (T1L,1,4), (TL0,4,2), (TL1,4,3), (TLL,4,4)):
        k(f"{MF} {vr(d)}, {P(a)}, {P(b)}, 0")
    k(f"""s_lshl_b32 s3, s20, 12
s_add_u32 s3, s3, {RED}
v_add_u32 v6, s3, v4
ds_write_b128 v6, {vr(T00)}
ds_write_b128 v6, {vr(T11)} offset:1024""")
    for r in range(4): k(f"v_cndmask_b32 v{T0L+r}, v{T1L+r}, v{T0L+r}, s[50:51]")
    k(f"""ds_write_b128 v6, {vr(T0L)} offset:2048
v_cndmask_b32 v{TL0}, v{TL1}, v{TL0}, s[52:53]
v_cndmask_b32 v{TL0+1}, v{TL1+1}, v{TL0+1}, s[52:53]
v_mov_b32 v{TL0+2}, v{TLL}
v_mov_b32 v{TL0+3}, v{TLL+1}
ds_write_b128 v6, {vr(TL0)} offset:3072
s_lshl_b32 s3, s20, 10
v_add_u32 v6, s3, v4
v_lshrrev_b32 v7, 3, v1
v_and_b32 v13, 7, v1
v_lshl_add_u32 v7, v7, 4, v13
v_lshlrev_b32 v7, 4, v7
v_add_u32 v7, 0x800, v7
v_add_u32 v13, 0xc00, v4
v_cmp_gt_u32 vcc, 32, v1
v_cndmask_b32 v7, v13, v7, vcc
s_cmp_eq_u32 s20, 2
s_cselect_b64 vcc, -1, 0
v_cndmask_b32 v6, v6, v7, vcc
v_add_u32 v6, {RED}, v6
s_mul_i32 s29, s23, 3
s_add_u32 s29, s29, s20
s_lshl_b32 s29, s29, 14
s_add_u32 s29, s29, s42
s_lshl_b32 s3, s22, 10
s_add_u32 s30, s29, s3
s_waitcnt vmcnt(0) lgkmcnt(0)
s_barrier
s_cmp_eq_u32 s20, 3
s_cbranch_scc1 L_p3_nopub""")
    k.optional(True)
    for c in range(4): k(f"ds_read_b128 {vr(184+4*c)}, v6 offset:{4096*c}")
    for r in range(4):
        k(f"v_add_f32 v{184+r}, v{184+r}, v{188+r}\nv_add_f32 v{192+r}, v{192+r}, v{196+r}\nv_add_f32 v{184+r}, v{184+r}, v{192+r}\nv_min_u32 v{184+r}, -2, v{184+r}")
    k(f"buffer_store_dwordx4 v[184:187], v4, s[8:11], s30 offen sc1")
    k.optional(False)
    k("L_p3_nopub:")
    k(f"""s_cmp_eq_u32 s45, 0
s_cbranch_scc1 L_p3_nog_dma
s_mov_b32 s34, 0                   ; gt
s_mov_b32 s35, s23                 ; d-tile
L_p3_gd_tile:
s_mov_b32 s36, s20                 ; kappa
L_p3_gd_k:
s_mul_i32 s3, s35, 18
s_add_u32 s3, s3, s36
s_lshl_b32 s3, s3, 10
s_add_u32 s3, s3, {hex(GT)}
s_mul_i32 s37, s36, 5
s_add_u32 s37, s37, s34
s_lshl_b32 m0, s37, 10""")
    k.optional(True)
    k("buffer_load_dwordx4 v4, s[8:11], s3 offen lds")
    k.optional(False)
    k(f"""s_add_u32 s36, s36, 4
s_cmp_lt_u32 s36, 18
s_cbranch_scc1 L_p3_gd_k
s_add_u32 s34, s34, 1
s_add_u32 s35, s35, 16
s_cmp_lt_u32 s35, 36
s_cbranch_scc1 L_p3_gd_tile
L_p3_nog_dma:""")
    k("""v_and_b32 v6, 1, v2
v_lshlrev_b32 v6, 2, v6
v_bfe_u32 v7, v2, 2, 1
v_lshl_add_u32 v6, v7, 3, v6
v_add_u32 v6, 2, v6
v_lshl_add_u32 v6, v3, 4, v6
v_lshlrev_b32 v6, 4, v6
v_add_u32 v7, 0x10000, v6""")
    QW = lambda kp, t: ar(12*(kp % 3) + 4*t)
    def qrd(kp):
        lds_rd(QW(kp, 0), 90 + 2*kp); lds_rd(QW(kp, 1), 91 + 2*kp); lds_rd(QW(kp, 2), 5*kp + 4, ('v6', 'v7'))
    qrd(0); qrd(1)
    for kp in range(18):
        if kp + 2 < 18: qrd(kp+2)
        for t in range(3):
            for mt in range(2):
                k(f"{MF} {vr(ACC(t,mt))}, {QW(kp,t)}, {vr(A(mt,kp))}, {'0' if kp == 0 else vr(ACC(t,mt))}")
    k(f"""s_cmp_eq_u32 s45, 0
s_cbranch_scc1 L_p3_nog
s_waitcnt vmcnt(0)
s_barrier
s_mov_b32 s35, s23
v_mov_b32 v14, v4
v_mov_b32 v15, v5
L_p3_g_tile:""")
    k.optional(True)
    GW = lambda kp: ar(4*(kp % 6))
    GA = lambda mt: 184 + 4*mt
    for kp in range(5): lds_rd(GW(kp), 5*kp, ('v14', 'v15'))
    for kp in range(18):
        if kp + 5 < 18: lds_rd(GW(kp+5), 5*(kp+5), ('v14', 'v15'))
        for mt in range(2):
            k(f"{MF} {vr(GA(mt))}, {GW(kp)}, {vr(A(mt,kp))}, {'0' if kp == 0 else vr(GA(mt))}")
    frag_store_off(k, 35, 36)
    k(f"""s_add_u32 s36, s36, s25
s_add_u32 s36, s36, {hex(X3T)}
s_add_u32 s37, s36, 18432
v_add_u32 v14, 0x400, v14
v_add_u32 v15, 0x400, v15""")
    for mt in range(2):
        k(f"v_cvt_pk_bf16_f32 v{192+2*mt}, v{GA(mt)}, v{GA(mt)+1}\nv_cvt_pk_bf16_f32 v{193+2*mt}, v{GA(mt)+2}, v{GA(mt)+3}")
        k(f"buffer_store_dwordx2 {vr(192+2*mt,2)}, v4, s[8:11], s{36+mt} offen")
    k("""s_add_u32 s35, s35, 16
s_cmp_lt_u32 s35, 36
s_cbranch_scc1 L_p3_g_tile""")
    k.optional(False)
    k("L_p3_nog:")
    BQ = lambda mt: 232 + 6*mt
    for mt in range(2):
        for t in range(3):
            for r in range(4 if t < 2 else 2):
                a = ACC(t, mt) + r
                phi(k, a, a, RL+mt, RL2+mt, TMP + r, EPS)
        a0, a1, a2 = ACC(0, mt), ACC(1, mt), ACC(2, mt)
        k(f"""v_cvt_pk_bf16_f32 v{BQ(mt)}, v{a0}, v{a0+1}
v_cvt_pk_bf16_f32 v{BQ(mt)+1}, v{a0+2}, v{a0+3}
v_cvt_pk_bf16_f32 v{BQ(mt)+2}, v{a2}, v{a2+1}
v_mov_b32 v{BQ(mt)+3}, 0
v_cvt_pk_bf16_f32 v{BQ(mt)+4}, v{a1}, v{a1+1}
v_cvt_pk_bf16_f32 v{BQ(mt)+5}, v{a1+2}, v{a1+3}""")
    k(f"""s_cmp_eq_u32 s20, 3
s_cbranch_scc1 L_p3_nogather
s_mov_b32 s34, 0
s_add_u32 s35, s29, 4096
s_add_u32 s36, s29, 8192
s_add_u32 s37, s29, 12288
L_p3_poll:""")
    k.optional(True)
    for c in range(16):
        k(f"buffer_load_dwordx4 {vr(16+4*c)}, v4, s[8:11], s{(29,35,36,37)[c//4]} offen offset:{1024*(c%4)} sc1")
    k("v_max_u32 v13, v16, v17")
    for r in range(2, 64, 2): k(f"v_max3_u32 v13, v{16+r}, v{17+r}, v13")
    k(f"""v_cmp_eq_u32 vcc, -1, v13
s_add_u32 s34, s34, 1
s_cmp_gt_u32 s34, 0x40000
s_cbranch_scc1 L_p3_polled
s_cbranch_vccnz L_p3_poll
L_p3_polled:""")
    for step in (8, 4, 2, 1):
        for c in range(step):
            for r in range(4): k(f"v_add_f32 v{16+4*c+r}, v{16+4*c+r}, v{16+4*(c+step)+r}")
    k(f"""v_cvt_pk_bf16_f32 v16, v16, v17
v_cvt_pk_bf16_f32 v17, v18, v19
s_lshl_b32 s3, s20, 9
s_add_u32 s3, s3, {FIN}
v_lshl_add_u32 v13, v1, 3, s3
ds_write_b64 v13, v[16:17]""")
    k.optional(False)
    AL0, AL1, BE0, BE1 = 24, 28, 32, 36
    k(f"""L_p3_nogather:
v_lshlrev_b32 v13, 3, v1
v_add_u32 v13, {FIN}, v13
v_and_b32 v14, 3, v2
v_lshl_add_u32 v14, v3, 3, v14
v_lshlrev_b32 v14, 3, v14
v_add_u32 v14, {FIN}, v14
s_waitcnt lgkmcnt(0)
s_barrier
ds_read_b64 v[{AL0}:{AL0+1}], v13
ds_read_b64 v[{AL1+2}:{AL1+3}], v13 offset:512
ds_read_b64 v[20:21], v13 offset:1024
ds_read_b64 v[{BE0}:{BE0+1}], v14 offset:1024
ds_read_b64 v[{BE1+2}:{BE1+3}], v14 offset:1056
v_mov_b32 v{AL0+3}, 0
v_mov_b32 v{AL1+1}, 0
v_mov_b32 v{BE0+3}, 0
v_mov_b32 v{BE1+1}, 0
v_cndmask_b32 v{AL0+2}, 0, v20, s[52:53]
v_cndmask_b32 v{AL1}, 0, v20, s[54:55]
v_cndmask_b32 v{BE0+2}, 0, v21, s[52:53]
v_cndmask_b32 v{BE1}, 0, v21, s[54:55]
s_lshl_b32 s3, s23, 10
s_add_u32 s36, s25, s41
s_add_u32 s34, s36, s3
s_lshr_b32 s3, s23, 3
s_add_u32 s3, s3, 16
s_lshl_b32 s3, s3, 10
s_add_u32 s36, s36, s3
s_bfe_u32 s3, s23, 0x20001
s_lshl_b32 s3, s3, 8
s_add_u32 s36, s36, s3
s_and_b32 s3, s23, 1
s_lshl_b32 s3, s3, 3
s_add_u32 s36, s36, s3
s_add_u32 s35, s34, 18432
s_add_u32 s37, s36, 18432
v_lshlrev_b32 v15, 4, v2
v_lshl_add_u32 v15, v3, 2, v15
v_cmp_eq_u32 s[46:47], 0, v3""")
    D = lambda mt, x: 40 + 16*mt + 4*x
    for mt in range(2):
        b0, b1 = vr(BQ(mt)), vr(BQ(mt)+2)
        k(f"{MF} {vr(D(mt,2))}, {vr(BE0)}, {b0}, 0\n{MF} {vr(D(mt,3))}, {vr(BE1)}, {b1}, 0")
        k(f"{MF} {vr(D(mt,0))}, {vr(AL0)}, {b0}, 0\n{MF} {vr(D(mt,1))}, {vr(AL1)}, {b1}, 0")
    for mt in range(2):
        O = 72 + 8*mt
        for h in range(2):
            rd = D(mt, 2+h) + 3
            k(f"v_add_f32 v{rd}, v{rd}, v{EPS}\nv_rcp_f32 v{rd}, v{rd}")
        for h in range(2):
            rd = D(mt, 2+h) + 3
            for r in range(4): k(f"v_mul_f32 v{D(mt,h)+r}, v{D(mt,h)+r}, v{rd}")
            for r in range(2): k(f"v_mul_f32 v{D(mt,2+h)+r}, v{D(mt,2+h)+r}, v{rd}")
            k(f"v_cvt_pk_bf16_f32 v{O+2*h}, v{D(mt,h)}, v{D(mt,h)+1}\nv_cvt_pk_bf16_f32 v{O+2*h+1}, v{D(mt,h)+2}, v{D(mt,h)+3}")
            k(f"v_cvt_pk_bf16_f32 v{O+4+h}, v{D(mt,2+h)}, v{D(mt,2+h)+1}")
        k(f"buffer_store_dwordx4 {vr(O)}, v4, s[8:11], s{34+mt} offen")
        k(f"v_cndmask_b32 v{O+4}, v{O+5}, v{O+4}, s[46:47]")
    k("s_mov_b32 exec_hi, 0")
    for mt in range(2): k(f"buffer_store_dword v{72+8*mt+4}, v15, s[8:11], s{36+mt} offen")
    k("s_endpgm")

def kernel3():
    k = Kern("k3_kernel")
    k(f"""s_cmp_ge_u32 s2, 256
s_cbranch_scc1 L_k3_exit
s_mov_b32 s40, {hex(XH1)}
s_mov_b32 s41, {hex(O1)}
s_mov_b32 s42, {hex(KVP1)}
s_mov_b32 s45, 0
L_p3_body:""")
    role_P3(k)
    k("L_k3_exit:\ns_endpgm")
    return k


def role_P4(k):
    k("""s_load_dwordx2 s[4:5], s[0:1], 64
s_load_dwordx2 s[6:7], s[0:1], 48""")
    lane_setup(k)
    k("""s_and_b32 s23, s2, 7
s_lshl_b32 s23, s23, 2
s_lshr_b32 s3, s2, 3
s_and_b32 s24, s3, 3
s_add_u32 s23, s23, s24            ; rb
s_lshr_b32 s24, s3, 2              ; cb""")
    cb_setup(k, 24)
    k(f"""s_lshl_b32 s25, s23, 2
s_add_u32 s25, s25, s20            ; s-tile
s_mul_i32 s26, s25, 18432
s_mul_i32 s27, s22, 18432
s_add_u32 s27, s27, s42
s_add_u32 s28, s26, s40
s_add_u32 s29, s26, s41
v_add_u32 v5, 0x10000, v4
s_waitcnt lgkmcnt(0)""")
    srd(k, 8, 4, 5, WS_END)
    k(f"""s_lshl_b32 s43, s20, 10
s_cmp_eq_u32 s21, 0
s_cbranch_scc1 L_p4_dma0
s_add_u32 s3, s27, {4*18*1024}
s_add_u32 s3, s3, s43
s_mov_b32 m0, s43""")
    k.optional(True)
    for m in range(5):
        if m == 4: k("s_cmp_ge_u32 s20, 2\ns_cbranch_scc1 L_p4_dma0")
        k(f"buffer_load_dwordx4 v4, s[8:11], s3 offen lds\ns_add_u32 s3, s3, 4096\ns_add_u32 m0, m0, 4096")
    k.optional(False)
    k("L_p4_dma0:")
    for kk in range(18):
        k(f"buffer_load_dwordx4 {vr(XB+4*kk)}, v4, s[8:11], s28 offen offset:{(kk % 4)*1024}")
        if kk % 4 == 3: k("s_add_u32 s28, s28, 4096")
    RES = 144
    for slot in range(5):
        tile_index(k, slot, 38); frag_store_off(k, 38, 39)
        k(f"s_add_u32 s39, s39, s29\nbuffer_load_dwordx2 {vr(RES+2*slot,2)}, v4, s[8:11], s39 offen")
    k(f"s_add_u32 s3, s27, s43\ns_add_u32 m0, s43, {18*1024}")
    for m in range(18):
        k(f"buffer_load_dwordx4 v4, s[8:11], s3 offen lds")
        if m < 17: k(f"s_add_u32 s3, s3, 4096\ns_add_u32 m0, m0, 4096")
    k(f"""s_cmp_eq_u32 s45, 0
s_cselect_b32 s12, s4, s6
s_cselect_b32 s13, s5, s7
s_mov_b32 s14, {hex(XH_SZ)}
s_cselect_b32 s14, s10, s14
s_mov_b32 s15, 0x20000
s_cselect_b32 s30, 10, 6
s_cselect_b32 s31, s44, 0
s_cselect_b64 vcc, -1, 0
s_add_u32 s31, s31, s26
v_mul_u32_u24 v6, 1152, v2
v_lshl_add_u32 v6, v3, 4, v6
v_cndmask_b32 v6, v6, v4, vcc
v_mov_b32 v8, 0
s_cmp_eq_u32 s24, 0
s_cselect_b32 s3, 0, 1.0
v_mov_b32 v9, s3
v_cmp_eq_u32 vcc, 0, v3
v_cndmask_b32 v9, 1.0, v9, vcc""")
    def pre(k, slot, kk):
        need = None
        if slot == 0 and kk == 0: k("s_waitcnt vmcnt(41)\ns_barrier"); return
        if slot in (1, 2, 3) and kk == 0: need = (18*slot - 1)//4
        if slot == 4 and kk == 0: need = 15
        if slot == 4 and kk == 10: need = 17
        if need is not None: k(f"s_waitcnt vmcnt({17-need + slot-1})\ns_barrier")
    def epi(k, slot, lo, hi):
        tile_index(k, slot, 38)
        E = 128 + 8*(slot % 2)
        k(f"""s_lshr_b32 s39, s38, 1
s_lshl_b32 s39, s39, s30
s_and_b32 s3, s38, 1
s_lshl_b32 s3, s3, 3
s_add_u32 s39, s39, s3
s_add_u32 s39, s39, s31""")
        for q in range(2):
            k(f"v_lshlrev_b32 v{E+2*q}, 16, v{RES+2*slot+q}\nv_and_b32 v{E+2*q+1}, 0xffff0000, v{RES+2*slot+q}")
        for r in range(4): k(f"v_add_f32 v{E+r}, v{E+r}, v{lo+r}")
        k(f"v_cvt_pk_bf16_f32 v{E+4}, v{E}, v{E+1}\nv_cvt_pk_bf16_f32 v{E+5}, v{E+2}, v{E+3}")
        k(f"buffer_store_dwordx2 {vr(E+4,2)}, v6, s[12:15], s39 offen")
        if slot == 1: k(f"v_mul_f32 v{E+1}, v{E+1}, v9")
        for r in range(4): k(f"v_fmac_f32 v8, v{E+r}, v{E+r}")
    gemm_tiles(k, 'p4', False, False, epi, pre_tile=pre)
    k(f"""s_cmp_lg_u32 s45, 0
s_cbranch_scc1 L_p4_end
v_mov_b32 v11, 1.0
v_mfma_f32_16x16x4_f32 v[112:115], v11, v8, 0
v_lshlrev_b32 v13, 2, v2
s_lshl_b32 s3, s25, 6
s_add_u32 s3, s3, {hex(SS2)}
s_mov_b64 exec, 0xffff
buffer_atomic_add_f32 v112, v13, s[8:11], s3 offen
L_p4_end:
s_endpgm""")

def role_J4(k, first):
    k("s_load_dwordx2 s[4:5], s[0:1], 64")
    lane_setup(k)
    k(f"""s_sub_u32 s21, s2, {first}
s_lshl_b32 s21, s21, 2
s_add_u32 s21, s21, s20            ; job 0..107
s_mul_hi_u32 s22, s21, {hex((1<<32)//3+1)}   ; T
s_mul_i32 s3, s22, 3
s_sub_u32 s23, s21, s3
s_mul_i32 s23, s23, 6
s_add_u32 s24, s23, 6
s_lshr_b32 s3, s22, 1
s_lshl_b32 s3, s3, 5
s_and_b32 s25, s22, 1
s_lshl_b32 s25, s25, 2
s_add_u32 s3, s3, s25
s_cmp_ge_u32 s22, 18
s_cselect_b32 s25, 576, 0
s_sub_u32 s3, s3, s25
v_lshrrev_b32 v8, 2, v2
v_and_b32 v9, 3, v2
v_lshl_add_u32 v8, v8, 3, v9
v_add_u32 v8, s3, v8               ; d' (signed)
v_cvt_f32_i32 v10, v8
v_mul_f32 v10, {fl(1/576)}, v10
v_lshlrev_b32 v9, 2, v3
v_cvt_f32_u32 v9, v9               ; 4g
v_and_b32 v11, 1, v2
v_lshlrev_b32 v11, 31, v11
v_xor_b32 v11, {fl(1/24)}, v11
v_mov_b32 v12, {fl(1/24)}
v_cvt_pk_bf16_f32 v11, v11, v12
s_mov_b32 s26, {fl(SC)}
s_mul_i32 s27, s22, 18432
s_add_u32 s27, s27, {hex(GT)}
s_waitcnt lgkmcnt(0)""")
    srd(k, 8, 4, 5, WS_END)
    k(f"""L_j4_loop:
s_lshl_b32 s3, s23, 4
v_cvt_f32_u32 v13, s3
v_add_f32 v13, v13, v9
v_cmp_eq_f32 vcc, 0, v13
v_mul_f32 v13, v13, v10
v_fract_f32 v13, v13""")
    for q in range(4):
        k(f"""v_fmamk_f32 v14, v10, {fl(float(q))}, v13
v_cos_f32 v15, v14
v_sin_f32 v16, v14
v_mul_f32 v15, s26, v15
v_mul_f32 v16, s26, v16
v_cvt_pk_bf16_f32 v{20+q}, v15, -v16""")
    k(f"""v_cndmask_b32 v20, v20, v11, vcc
s_lshl_b32 s3, s23, 10
s_add_u32 s3, s3, s27
buffer_store_dwordx4 v[20:23], v4, s[8:11], s3 offen
s_add_u32 s23, s23, 1
s_cmp_lt_u32 s23, s24
s_cbranch_scc1 L_j4_loop
s_endpgm""")

def kernel4():
    k = Kern("k4_kernel")
    k(f"""s_cmp_ge_u32 s2, 256
s_cbranch_scc1 L_k4_exit
s_mov_b32 s40, {hex(O1)}
s_mov_b32 s41, {hex(XH1)}
s_mov_b32 s42, {hex(WOH)}
s_mov_b32 s44, {hex(XH2)}
s_mov_b32 s45, 0
L_p4_body:""")
    role_P4(k)
    k("L_k4_exit:\ns_endpgm")
    return k
def kernel5(k2):
    k = Kern("k5_kernel", shares=k2)
    k(f"""s_cmp_ge_u32 s2, 315
s_cbranch_scc1 L_k5_exit
s_cmp_ge_u32 s2, 288
s_cbranch_scc1 L_k5_j4
s_mov_b32 s40, {hex(XH2)}
s_mov_b32 s41, {hex(XH3)}
s_mov_b32 s42, {hex(SS2)}
s_branch L_p2_body
L_k5_j4:""")
    role_J4(k, 288)
    k("L_k5_exit:\ns_endpgm")
    return k
def kernel6(k3):
    k = Kern("k6_kernel", shares=k3)
    k(f"""s_cmp_ge_u32 s2, 256
s_cbranch_scc1 L_k6_exit
s_mov_b32 s40, {hex(XH3)}
s_mov_b32 s41, {hex(O2)}
s_mov_b32 s42, {hex(KVP2)}
s_mov_b32 s45, 1
s_branch L_p3_body
L_k6_exit:
s_endpgm""")
    return k
def kernel7(k4):
    k = Kern("k7_kernel", shares=k4)
    k(f"""s_cmp_ge_u32 s2, 256
s_cbranch_scc1 L_k7_exit
s_mov_b32 s40, {hex(O2)}
s_mov_b32 s41, {hex(X3T)}
s_mov_b32 s42, {hex(WOT)}
s_mov_b32 s44, 0
s_mov_b32 s45, 1
s_branch L_p4_body
L_k7_exit:
s_endpgm""")
    return k

def kernel1():
    k = Kern("k1_kernel")
    k("""s_cmp_ge_u32 s2, 328
s_cbranch_scc1 L_k1_exit
s_cmp_ge_u32 s2, 256
s_cbranch_scc1 L_k1_t1""")
    role_P1(k)
    k("L_k1_t1:")
    role_T1(k, 256)
    k("L_k1_exit:\ns_endpgm")
    return k

if __name__ == "__main__":
    k1, k2, k3, k4 = kernel1(), kernel2(), kernel3(), kernel4()
    ks = [k1, k2, k3, k4, kernel5(k2), kernel6(k3), kernel7(k4)]
    launches = [("k1_kernel", 328, 256, 45*1024), ("k2_kernel", 576, 256, 46*1024), ("k3_kernel", 256, 256, 146*1024),
                ("k4_kernel", 256, 256, 90*1024), ("k5_kernel", 315, 256, 46*1024), ("k6_kernel", 256, 256, 146*1024),
                ("k7_kernel", 256, 256, 90*1024)]
    write_module(sys.argv[1] if len(sys.argv) > 1 else "out.s", launches, ks)
```

```python
import re

REG_RE = re.compile(r'^(-|\|)?(abs\()?([vas])(\d+|\[(\d+):(\d+)\])\)?\|?$')
TRANS = ('v_exp_f32', 'v_log_f32', 'v_rcp_f32', 'v_rsq_f32', 'v_sqrt_f32', 'v_sin_f32', 'v_cos_f32', 'v_rcp_iflag_f32')
SALU_NODST = ('s_cmp', 's_waitcnt', 's_barrier', 's_nop', 's_branch', 's_cbranch', 's_endpgm', 's_sleep', 's_setprio', 's_bitcmp')

def regs_of(tok):
    tok = tok.strip()
    if tok in ('vcc',): return {('s', 106), ('s', 107)}
    if tok == 'vcc_lo': return {('s', 106)}
    if tok == 'vcc_hi': return {('s', 107)}
    if tok == 'exec': return {('s', 126), ('s', 127)}
    if tok == 'exec_lo': return {('s', 126)}
    if tok == 'exec_hi': return {('s', 127)}
    if tok == 'm0': return {('s', 124)}
    m = REG_RE.match(tok)
    if not m: return set()
    kind = m.group(3)
    if m.group(5) is not None:
        lo, hi = int(m.group(5)), int(m.group(6))
    else:
        lo = hi = int(m.group(4))
    return {(kind, i) for i in range(lo, hi + 1)}

def split_ops(s):
    out, depth, cur = [], 0, ''
    for ch in s:
        if ch in '[(': depth += 1
        if ch in '])': depth -= 1
        if ch == ',' and depth == 0:
            out.append(cur.strip()); cur = ''
        else: cur += ch
    if cur.strip(): out.append(cur.strip())
    return out

class Ins:
    __slots__ = ('text', 'mn', 'ops', 'flags', 'rd', 'wr', 'cls', 'passes', 'srcc', 'srcab', 'label', 'target', 'opt', 'dpp', 'wide_store_data', 'states', 'tag')
    def __init__(self, text, opt=False):
        self.text = text; self.opt = opt; self.tag = None
        if '@tag=' in text:
            text, self.tag = text.split('@tag='); self.tag = self.tag.strip(); text = text.strip(); self.text = text
        if text.startswith('WAITVM'):
            self.cls = 'waitvm'; self.tag = text.split()[1]; self.mn = ''; self.ops = []; self.flags = ''; self.label = None; self.target = None; self.rd = set(); self.wr = set(); self.states = 0; return
        self.label = None; self.target = None
        self.rd = set(); self.wr = set(); self.cls = 'other'; self.passes = 0
        self.srcc = set(); self.srcab = set(); self.dpp = False; self.wide_store_data = set(); self.states = 1
        t = text.split(';')[0].strip()
        if t.endswith(':'):
            self.label = t[:-1]; self.cls = 'label'; self.mn = ''; self.ops = []; self.flags = ''; self.states = 0; return
        if not t or t.startswith('.'):
            self.cls = 'dir'; self.mn = ''; self.ops = []; self.flags = ''; self.states = 0; return
        p = t.split(None, 1); mn = p[0]; rest = p[1] if len(p) > 1 else ''
        self.mn = mn
        ops = split_ops(rest)
        flags = ''
        if ops:
            last = ops[-1].split(None, 1)
            if len(last) > 1 and not mn.startswith('s_waitcnt'):
                ops[-1] = last[0]; flags = last[1]
        self.ops = ops; self.flags = flags
        R = [regs_of(o) for o in ops]
        U = lambda l: set().union(*l) if l else set()
        fl = flags.split()
        if mn.startswith('v_mfma'):
            self.cls = 'mfma'; self.wr = R[0]; self.rd = U(R[1:]); self.srcab = R[1] | R[2]; self.srcc = R[3]
            if '16x16x32' in mn or '16x16x16' in mn: self.passes = 4
            elif '32x32x16' in mn or '32x32x8' in mn or '16x16x4_f32' in mn: self.passes = 8
            else: raise ValueError('unknown mfma ' + mn)
        elif mn.startswith('v_'):
            self.cls = 'valu'
            self.dpp = ('_dpp' in mn) or any(f.startswith(('row_', 'quad_perm', 'wave_')) for f in fl)
            if mn.startswith('v_cmpx'): raise ValueError('no cmpx')
            if mn.startswith(('v_add_co', 'v_sub_co', 'v_subrev_co', 'v_addc_co', 'v_subb_co', 'v_subbrev_co', 'v_mad_u64_u32', 'v_div_scale')):
                self.wr = R[0] | R[1]; self.rd = U(R[2:])
            elif mn.startswith(('v_permlane16_swap', 'v_permlane32_swap', 'v_swap')):
                self.wr = R[0] | R[1]; self.rd = R[0] | R[1]
            elif mn.startswith('v_nop'):
                pass
            else:
                self.wr = R[0]; self.rd = U(R[1:])
                if mn.startswith(('v_fmac', 'v_dot2c', 'v_pk_fmac', 'v_writelane', 'v_fma_mixlo', 'v_fma_mixhi')) or self.dpp or 'sdwa' in mn: self.rd |= R[0]
        elif mn.startswith('ds_'):
            self.cls = 'ds'
            if mn.startswith(('ds_read', 'ds_bpermute', 'ds_permute', 'ds_swizzle')) or '_rtn' in mn:
                self.wr = R[0]; self.rd = U(R[1:])
            else: self.rd = U(R)
        elif mn.startswith('buffer_'):
            self.cls = 'vmem'
            if mn.startswith(('buffer_inv', 'buffer_wbl2')): pass
            elif mn.startswith('buffer_load'):
                if 'lds' in fl: self.rd = U(R) | {('s', 124)}
                else: self.wr = R[0]; self.rd = U(R[1:])
            else:
                self.rd = U(R)
                if 'atomic' in mn and 'sc0' in fl: self.wr = R[0]
                if mn.endswith(('x3', 'x4')): self.wide_store_data = R[0]
        elif mn.startswith('global_'):
            self.cls = 'vmem'
            if mn.startswith('global_load_lds'): self.rd = U(R) | {('s', 124)}
            elif mn.startswith('global_load'): self.wr = R[0]; self.rd = U(R[1:])
            elif 'atomic' in mn and 'sc0' in fl: self.wr = R[0]; self.rd = U(R[1:])
            else:
                self.rd = U(R)
                if mn.endswith(('x3', 'x4')): self.wide_store_data = R[1]
        elif mn.startswith(('s_load', 's_buffer_load', 's_memtime', 's_memrealtime', 's_atomic')):
            self.cls = 'smem'; self.wr = R[0]; self.rd = U(R[1:])
        elif mn.startswith('s_'):
            self.cls = 'salu'
            if mn.startswith(('s_branch', 's_cbranch')): self.target = ops[0]
            if mn == 's_nop': self.states = int(ops[0], 0) + 1
            if mn.startswith(SALU_NODST): self.rd = U(R)
            else:
                self.wr = R[0]; self.rd = U(R[1:])
                if mn.endswith('saveexec_b64'): self.wr |= regs_of('exec'); self.rd |= regs_of('exec')
                if mn.startswith(('s_addk', 's_mulk', 's_cmov')): self.rd |= R[0]
        else:
            raise ValueError('cannot parse: ' + text)

def need_states(p, c):
    n = 0
    vw = {r for r in p.wr if r[0] in 'va'}
    sw = {r for r in p.wr if r[0] == 's'}
    if p.cls == 'valu':
        isdot = p.mn.startswith('v_dot')
        if c.cls == 'mfma' and vw & c.rd: n = max(n, 3 if isdot else 2)
        if isdot and (vw & (c.rd | c.wr)):
            same_c = (c.mn == p.mn) and not (vw & set().union(*[regs_of(o) for o in c.ops[1:3]]))
            if not same_c: n = max(n, 3)
        if p.mn.startswith(TRANS) and vw & c.rd and not c.mn.startswith(TRANS): n = max(n, 1)
        if c.cls == 'valu':
            if c.dpp and vw & c.rd: n = max(n, 2)
            if c.mn.startswith(('v_readlane', 'v_readfirstlane')) and vw & c.rd: n = max(n, 1)
            if c.mn.startswith('v_permlane') and vw & c.rd: n = max(n, 2)
            if sw & c.rd:
                n = max(n, 4 if c.mn.startswith(('v_readlane', 'v_writelane')) else 2)
            if ('op_sel' in p.flags and not p.mn.startswith(('v_pk_', 'v_fma_mix_f32'))) or 'sdwa' in p.mn or p.mn.startswith(('v_fma_mixlo', 'v_fma_mixhi')):
                if vw & (c.rd | c.wr): n = max(n, 1)
        if c.cls in ('vmem',) and sw & c.rd: n = max(n, 5)
        if c.cls == 'mfma' and sw & c.rd: n = max(n, 2)
    elif p.cls == 'mfma':
        P = p.passes
        if c.cls == 'mfma':
            if vw & c.srcab: n = max(n, {4: 8, 8: 12}[P])
            if vw & c.srcc:
                if not (c.srcc == vw and c.passes == P): n = max(n, {4: 6, 8: 10}[P])
        elif c.cls in ('valu', 'vmem', 'ds'):
            if vw & (c.rd | c.wr): n = max(n, {4: 8, 8: 12}[P])
            if c.cls == 'valu' and p.srcc & c.wr: n = max(n, {4: 3, 8: 7}[P])
    elif p.cls == 'vmem':
        if p.wide_store_data & c.wr: n = max(n, 2 if c.cls in ('valu', 'mfma') else 1)
    elif p.cls == 'salu':
        if ('s', 124) in p.wr and ('s', 124) in c.rd and c.cls in ('vmem', 'ds'): n = max(n, 1)
    return n

class Kern:
    def __init__(self, name, shares=None):
        self.name = name; self.ins = []; self._opt = False; self.shares = shares
        self.maxv = -1; self.maxa = -1; self.maxs = -1
    def __call__(self, text):
        for line in text.split('\n'):
            if line.strip(): self.ins.append(Ins(line.strip(), self._opt))
    def optional(self, on):
        self._optn = getattr(self, '_optn', 0) + 1
        self._opt = self._optn if on else False
    def _waitcnt_pass(self):
        out = []; vm = []; lg = []; smem = set(); tags = {}; seen = set(); keep = []
        cur = False; sv = None
        for i in self.ins:
            if i.opt != cur:
                if cur:
                    vm = sv[0] + [e for e in vm if e[1] == cur]; lg = sv[1] + [e for e in lg if e[1] == cur]; smem = smem | sv[2]
                cur = i.opt
                if cur: sv = (list(vm), list(lg), set(smem))
            if i.cls in ('label', 'dir'):
                out.append(i); continue
            if i.cls == 'waitvm':
                assert i.tag in seen, 'unknown tag ' + i.tag
                idx = -1
                for k, e in enumerate(vm):
                    if tags.get(id(e)) == i.tag: idx = k
                if idx >= 0:
                    n = sum(1 for (r, o) in vm[idx+1:] if not o or o == i.opt)
                    assert n <= 63 or True
                    out.append(Ins(f's_waitcnt vmcnt({min(n, 63)})', i.opt)); vm = vm[idx+1:]
                continue
            if i.mn == 's_waitcnt':
                m = re.search(r'vmcnt\((\d+)\)', i.text)
                if m:
                    n = int(m.group(1))
                    while vm and sum(1 for (r, o) in vm[1:] if not o or o == i.opt) >= n:
                        vm.pop(0)
                m = re.search(r'lgkmcnt\((\d+)\)', i.text)
                if m:
                    n = int(m.group(1))
                    if n == 0: lg = []; smem = set()
                    elif not smem:
                        while lg and sum(1 for (r, o) in lg[1:] if not o or o == i.opt) >= n: lg.pop(0)
                out.append(i); continue
            touch = i.rd | i.wr
            w = []
            idx = -1
            for k, (regs, opt) in enumerate(vm):
                if regs & touch: idx = k
            if idx >= 0:
                n = sum(1 for (r, o) in vm[idx+1:] if not o or o == i.opt)
                n = min(n, 63)
                w.append(f'vmcnt({n})'); vm = vm[idx+1:]
            if smem & touch:
                w.append('lgkmcnt(0)'); lg = []; smem = set()
            else:
                idx = -1
                ltouch = i.rd if i.cls == 'ds' else touch
                for k, (regs, opt) in enumerate(lg):
                    if regs & ltouch: idx = k
                if idx >= 0:
                    n = sum(1 for (r, o) in lg[idx+1:] if not o or o == i.opt)
                    if smem: n = 0; smem = set(); lg = []
                    else: lg = lg[idx+1:]
                    w.append(f'lgkmcnt({min(n, 15)})')
            if w: out.append(Ins('s_waitcnt ' + ' '.join(w), i.opt))
            out.append(i)
            if i.cls == 'vmem':
                e = (set(i.wr), i.opt); vm.append(e); keep.append(e)
                if i.tag: tags[id(e)] = i.tag; seen.add(i.tag)
            elif i.cls == 'ds': lg.append((set(i.wr), i.opt))
            elif i.cls == 'smem': smem |= i.wr
            if i.mn == 's_endpgm': vm = []; lg = []; smem = set()
        self.ins = out
    def _hazard_pass(self):
        W = 24
        saved = {}
        for rep in range(2):
            out = []; hist = []
            for i in self.ins:
                if i.cls == 'label':
                    hist = hist + [[p, d] for p, d in saved.get(i.label, [])]
                    out.append(i); continue
                if i.cls == 'dir':
                    out.append(i); continue
                need = 0
                for p, d in hist:
                    need = max(need, need_states(p, i) - d)
                if need > 0 and rep == 1:
                    out.append(Ins(f's_nop {need-1}', i.opt))
                    for h in hist: h[1] += need
                out.append(i)
                for h in hist: h[1] += i.states
                hist = [h for h in hist if h[1] < W]
                hist.append([i, 0])
                if i.target is not None and rep == 0:
                    saved.setdefault(i.target, []).extend([(p, d) for p, d in hist])
                if i.mn in ('s_endpgm', 's_branch'): hist = []
            if rep == 1: self.ins = out
    def finalize(self):
        self._waitcnt_pass(); self._hazard_pass()
        for i in self.ins:
            for k, n in (i.rd | i.wr):
                if k == 'v': self.maxv = max(self.maxv, n)
                elif k == 'a': self.maxa = max(self.maxa, n)
                elif k == 's' and n < 102: self.maxs = max(self.maxs, n)
        if self.shares is not None:
            o = self.shares
            assert o.maxv >= 0, 'finalize the shared kernel first'
            self.maxv = max(self.maxv, o.maxv); self.maxa = max(self.maxa, o.maxa); self.maxs = max(self.maxs, o.maxs)
            assert ((self.maxv + 4) // 4) == ((o.maxv + 4) // 4) or o.maxa < 0
        body = '\n'.join(('' if i.cls == 'label' else ' ') + i.text for i in self.ins)
        name = self.name
        text = f'.globl {name}\n.p2align 8\n.type {name},@function\n{name}:\n{body}\n'
        acc = max(4, ((self.maxv + 1 + 3) // 4) * 4)
        nfv = acc + self.maxa + 1 if self.maxa >= 0 else self.maxv + 1
        assert acc <= 256 and nfv <= 512, (acc, nfv)
        desc = (f'.amdhsa_kernel {name}\n  .amdhsa_next_free_vgpr {max(nfv,1)}\n  .amdhsa_next_free_sgpr {max(self.maxs+1, 8)}\n'
                f'  .amdhsa_accum_offset {acc}\n  .amdhsa_group_segment_fixed_size 0\n  .amdhsa_kernarg_size 72\n'
                f'  .amdhsa_user_sgpr_count 2\n  .amdhsa_user_sgpr_kernarg_segment_ptr 1\n  .amdhsa_system_sgpr_workgroup_id_x 1\n'
                f'  .amdhsa_float_denorm_mode_32 3\n.end_amdhsa_kernel\n')
        return text, desc

def write_module(path, launches, kerns, header=''):
    s = header
    for (n, g, b, l) in launches:
        s += f'; @launch kernel={n} grid=({g},1,1) block=({b},1,1) lds={l}\n'
    s += '.amdgcn_target "amdgcn-amd-amdhsa--gfx950"\n.text\n'
    fin = [k.finalize() for k in kerns]
    for t, d in fin: s += t
    s += '.section .rodata,"a"\n'
    for t, d in fin: s += '.p2align 6\n' + d
    open(path, 'w').write(s)
    return fin


def merge(a, b, ratio=None):
    out = []; na, nb = len(a), len(b)
    if na == 0: return list(b)
    j = 0
    for i, x in enumerate(a):
        out.append(x)
        want = (i + 1) * nb // na if ratio is None else min(nb, (i + 1) * ratio)
        while j < want: out.append(b[j]); j += 1
    out += b[j:]
    return out

class Rec:
    def __init__(self): self.l = []
    def __call__(self, text):
        for line in text.split('\n'):
            if line.strip(): self.l.append(line.strip())
```

```python
import struct, sys, os
from asmlib import *
from layout import *

def f2u(x): return struct.unpack('<I', struct.pack('<f', x))[0]
def fl(x): return '0x%08x' % f2u(x)
def vr(b, n=4): return f'v[{b}:{b+n-1}]'
def ar(b, n=4): return f'a[{b}:{b+n-1}]'
MF = 'v_mfma_f32_16x16x32_bf16'
SC = (2/576)**0.5
LOG2E = 1.4426950408889634; LN2 = 0.6931471805599453

PROF = bool(os.environ.get("PROF"))
PROFB = 0x1A00000
def stamp(k, n):
    if PROF: k(f"s_memtime s[{64+2*n}:{65+2*n}]")
def prof_init(k, kid):
    if PROF:
        k(f"s_mov_b32 s96, {kid}")
        for n in range(16): k(f"s_mov_b32 s{64+2*n}, 0")
        k("s_memrealtime s[94:95]")
        stamp(k, 0)
def endpgm(k):
    if PROF:
        k("s_waitcnt vmcnt(0)")
        stamp(k, 14)
        k("s_memrealtime s[90:91]")
        k("s_waitcnt lgkmcnt(0)\ns_mov_b64 exec, -1\nv_mov_b32 v8, 0")
        for n in range(16): k(f"v_writelane_b32 v8, s{64+2*n}, {n}")
        k(f"""s_lshl_b32 s3, s96, 10
s_add_u32 s3, s3, s2
s_lshl_b32 s3, s3, 3
v_lshrrev_b32 v9, 6, v0
v_readfirstlane_b32 s97, v9
s_add_u32 s3, s3, s97
s_lshl_b32 s3, s3, 6
s_add_u32 s3, s3, {hex(PROFB)}
v_lshlrev_b32 v9, 2, v1
s_mov_b64 exec, 0xffff
buffer_store_dword v8, v9, s[8:11], s3 offen""")
    k("s_endpgm")
def emit(k, lines):
    for l in lines: k(l)

def srd(k, d, lo, hi, nbytes):
    k(f"s_mov_b32 s{d}, s{lo}\ns_mov_b32 s{d+1}, s{hi}\ns_mov_b32 s{d+2}, {hex(nbytes)}\ns_mov_b32 s{d+3}, 0x20000")
def lane_setup(k):
    k("""v_lshrrev_b32 v1, 6, v0
v_readfirstlane_b32 s20, v1
v_and_b32 v1, 63, v0
v_and_b32 v2, 15, v0
v_bfe_u32 v3, v0, 4, 2
v_lshlrev_b32 v4, 4, v1""")
def cb_setup(k, scb):
    k(f"""s_and_b32 s21, s{scb}, 1
s_xor_b32 s21, s21, 1
s_lshl_b32 s22, s{scb}, 2
s_lshr_b32 s27, s{scb}, 1
s_add_u32 s27, s27, 32""")
def rbcb(k):
    k("""s_and_b32 s23, s2, 7
s_lshl_b32 s23, s23, 2
s_lshr_b32 s3, s2, 3
s_and_b32 s24, s3, 3
s_add_u32 s23, s23, s24
s_lshr_b32 s24, s3, 2
s_lshl2_add_u32 s25, s23, s20""")
    cb_setup(k, 24)
def tau_to_ts(k, src, dst):
    k(f"""s_and_b32 s{dst}, s{src}, 64
s_bfe_u32 s3, s{src}, 0x10004
s_lshl_b32 s3, s3, 5
s_or_b32 s{dst}, s{dst}, s3
s_bfe_u32 s3, s{src}, 0x20001
s_lshl_b32 s3, s3, 3
s_or_b32 s{dst}, s{dst}, s3
s_bfe_u32 s3, s{src}, 0x10003
s_lshl_b32 s3, s3, 2
s_or_b32 s{dst}, s{dst}, s3
s_and_b32 s3, s{src}, 1
s_lshl_b32 s3, s3, 1
s_or_b32 s{dst}, s{dst}, s3
s_bfe_u32 s3, s{src}, 0x10005
s_or_b32 s{dst}, s{dst}, s3""")
def tile_of(slot): return slot

XB = 16
ACC = 88
XO = 45*1024
UP = 117*1024

def rows_dma_setup(k, vrow0, vrow1):
    k(f"""v_and_b32 v8, 7, v1
v_xor_b32 v9, v8, v3
v_lshl_add_u32 v{vrow0}, v9, 4, v{vrow0}
v_xor_b32 v9, 4, v9
v_lshl_add_u32 v{vrow1}, v9, 4, v{vrow1}""")
def rows_read_addr(k, va0, va1):
    k(f"""v_lshrrev_b32 v8, 1, v2
v_xor_b32 v8, v8, v3
v_lshlrev_b32 v9, 7, v2            ; (i>>3)*1024 + (i&7)*128
s_mul_i32 s3, s20, 18432
s_add_u32 s3, s3, {XO}
v_add_u32 v9, s3, v9
v_lshl_add_u32 v{va0}, v8, 4, v9
v_xor_b32 v8, 4, v8
v_lshl_add_u32 v{va1}, v8, 4, v9""")
def rows_read(k, va0, va1):
    order = [x for kk in range(9) for x in (kk, kk+9)]
    for kk in order:
        k(f"ds_read_b128 {vr(XB+4*kk)}, v{(va0, va1)[kk % 2]} offset:{(kk//2)*2048}")

def sym_gemm(swap, extra=(), xrd=None):
    out = []
    W = lambda kk, s: ar(20*(kk % 2) + 4*s)
    def rd(kk):
        r = Rec()
        if xrd: xrd(r, kk); xrd(r, kk+9)
        for s in range(5): r(f"ds_read_b128 {W(kk,s)}, v4 offset:{(kk*5+s)*1024}")
        return r.l
    out += rd(0)
    extra = list(extra); ne = len(extra)
    for kk in range(9):
        m = []
        for s in range(5):
            for h in range(2):
                acc = vr(ACC + 8*s + 4*h); x = vr(XB + 4*(kk + 9*h)); c = '0' if kk == 0 else acc
                m.append(f"{MF} {acc}, {x}, {W(kk,s)}, {c}" if swap else f"{MF} {acc}, {W(kk,s)}, {x}, {c}")
        side = rd(kk+1) if kk + 1 < 9 else []
        side += extra[kk*ne//9:(kk+1)*ne//9]
        out += merge(m, side)
    return out

def opt_slot(k, tag, slot, body):
    if slot == 4:
        k(f"s_cmp_eq_u32 s21, 0\ns_cbranch_scc1 L_{tag}_no5"); k.optional(True)
    body()
    if slot == 4:
        k.optional(False); k(f"L_{tag}_no5:")

CODE_PREFETCH = int(os.environ.get('CPF', 1))
PF2 = int(os.environ.get('PF2', 0))
ST = os.environ.get("ST", "")
def trig_loop(k, tag, lim):
    T = 88
    k(f"""s_lshr_b32 s3, s38, 1
s_lshl_b32 s3, s3, 5
s_and_b32 s39, s38, 1
s_lshl2_add_u32 s3, s39, s3
v_add_u32 v10, s3, v8              ; c
v_lshrrev_b32 v11, 1, v10
v_and_b32 v12, 1, v10
v_cvt_f32_u32 v12, v12
v_mul_f32 v12, {fl(0.25)}, v12
v_cvt_f32_u32 v11, v11
v_mul_f32 v11, {fl(1/576)}, v11
v_cmp_eq_u32 vcc, 0, v10
v_cndmask_b32 v11, v11, 0.5, vcc
v_cmp_eq_u32 vcc, 1, v10
v_cndmask_b32 v12, v12, 0, vcc
v_cos_f32 v15, v11
v_add_f32 v15, v15, v15            ; 2cos(delta)
L_{tag}:
s_lshl_b32 s3, s33, 5
v_cvt_f32_u32 v13, s3
v_add_f32 v13, v13, v9
v_fma_f32 v13, v13, v11, v12
v_fract_f32 v13, v13
v_add_f32 v{T+1}, v13, v11
v_cos_f32 v{T}, v13
v_cos_f32 v{T+1}, v{T+1}
s_mul_i32 s3, s33, 5
s_add_u32 s3, s3, s32
s_lshl_b32 s3, s3, 10
v_add_u32 v14, s3, v4""")
    for u in range(2, 8): k(f"v_fma_f32 v{T+u}, v15, v{T+u-1}, -v{T+u-2}")
    for q in range(4): k(f"v_cvt_pk_bf16_f32 v{T+8+q}, v{T+2*q}, v{T+2*q+1}")
    k(f"""s_add_u32 s33, s33, s34
s_cmp_lt_u32 s33, {lim}
ds_write_b128 v14, {vr(T+8)}
s_cbranch_scc1 L_{tag}""")

def y2_exchange_store(k, tag, sbase, LX, st, pk):
    k(f"""s_and_b32 s38, s20, 1            ; ub
s_lshl_b32 s3, s20, 10
s_add_u32 s3, s3, {LX}
v_lshl_add_u32 v5, v1, 3, s3
v_xor_b32 v6, 0x400, v5
s_cmp_eq_u32 s38, 0
s_cselect_b64 vcc, -1, 0""")
    for q in range(2):
        for r in range(2):
            k(f"v_cndmask_b32 v{132+2*q+r}, v{pk(q)+r}, v{pk(2+q)+r}, vcc")
            k(f"v_cndmask_b32 v{pk(q)+r}, v{pk(2+q)+r}, v{pk(q)+r}, vcc")
        k(f"ds_write_b64 v5, {vr(132+2*q,2)} offset:{512*q}")
    k(f"""s_lshr_b32 s3, s25, 1
s_lshl_b32 s3, s3, 8
s_add_u32 s39, s3, s{sbase}        ; + pi*256
v_mul_u32_u24 v7, {2*JP_ST}, v3
v_lshl_add_u32 v7, v2, 4, v7
s_cmp_eq_u32 s21, 0
s_cbranch_scc1 L_{tag}_no5""")
    k.optional(True)
    k(f"""s_lshr_b32 s3, s27, 1
s_lshl_b32 s3, s3, 3
s_and_b32 s35, s27, 1
s_add_u32 s3, s3, s35
s_mul_i32 s3, s3, {JP_ST}
s_add_u32 s3, s3, s39
s_lshl3_add_u32 s3, s38, s3
buffer_store_dwordx2 {vr(pk(4),2)}, v7, s[8:11], s3 offen {st}""")
    k.optional(False)
    k(f"""L_{tag}_no5:
s_lshl_b32 s3, s24, 1
s_add_u32 s3, s3, s38
s_mul_i32 s3, s3, {8*JP_ST}
s_add_u32 s39, s39, s3
s_add_u32 s35, s39, {JP_ST}
s_waitcnt lgkmcnt(0)
s_barrier
ds_read_b64 v[132:133], v6
ds_read_b64 v[134:135], v6 offset:512""")
    for q in range(2):
        for r in range(2):
            k(f"v_cndmask_b32 v{128+r}, v{132+2*q+r}, v{pk(q)+r}, vcc\nv_cndmask_b32 v{130+r}, v{pk(q)+r}, v{132+2*q+r}, vcc".replace("v128", f"v{136+4*q}").replace("v129", f"v{137+4*q}").replace("v130", f"v{138+4*q}").replace("v131", f"v{139+4*q}"))
        k(f"buffer_store_dwordx4 {vr(136+4*q)}, v7, s[8:11], s{(39,35)[q]} offen {st}")

def ss_addr(k, dst, base):
    k(f"""s_lshr_b32 s{dst}, s25, 4
s_lshl_b32 s{dst}, s{dst}, 10
s_bfe_u32 s3, s25, 0x20001
s_lshl_b32 s3, s3, 8
s_add_u32 s{dst}, s{dst}, s3
s_and_b32 s3, s25, 8
s_add_u32 s{dst}, s{dst}, s3
s_and_b32 s3, s25, 1
s_lshl2_add_u32 s{dst}, s3, s{dst}
s_add_u32 s{dst}, s{dst}, {hex(base)}""")

LX1 = 157*1024
def kernel1():
    k = Kern("k1_kernel")
    prof_init(k, 1)
    k("""s_cmp_ge_u32 s2, 256
s_cbranch_scc1 L_k1_exit
s_load_dwordx2 s[4:5], s[0:1], 64
s_load_dwordx2 s[6:7], s[0:1], 0
s_load_dwordx4 s[48:51], s[0:1], 8
s_load_dwordx2 s[52:53], s[0:1], 32""")
    if CODE_PREFETCH:
        k("""s_getpc_b64 s[54:55]
L_k1_pc:
s_sub_u32 s54, s54, L_k1_pc-k1_kernel
s_subb_u32 s55, s55, 0
s_bfe_u32 s3, s2, 0x30003
s_lshl_b32 s3, s3, 13
v_lshl_add_u32 v8, v0, 7, s3
v_min_u32 v8, L_code_end-k1_kernel-4, v8
v_mov_b32 v9, s55
v_add_co_u32 v8, vcc, s54, v8
v_addc_co_u32 v9, vcc, 0, v9, vcc
v_cmp_gt_u32 vcc, 64, v0
s_cbranch_vccz L_k1_nopf
global_load_dword v127, v[8:9], off
L_k1_nopf:""")
    lane_setup(k); rbcb(k)
    k(f"""s_and_b32 s3, s2, 7
s_and_b32 s47, s23, 3
s_mul_i32 s46, s3, 3
s_add_u32 s46, s46, s47
s_add_u32 s61, s3, 24
s_cmp_lt_u32 s47, 3
s_cselect_b32 s47, s46, s61
s_sub_u32 s61, s47, 27
s_lshl3_add_u32 s61, s61, s24
s_cmp_lt_u32 s61, 32
s_cselect_b32 s46, 1, 2
s_cmp_lt_u32 s47, 27
s_cselect_b32 s46, 0, s46
s_cselect_b32 s47, s47, s61
s_cmp_lt_u32 s20, 4
s_cbranch_scc1 L_k1_compute""")
    k(f"""s_sub_u32 s20, s20, 4
s_sub_u32 s25, s25, 4
v_lshrrev_b32 v5, 3, v1
v_mul_u32_u24 v5, 1152, v5
v_add_u32 v6, {8*1152}, v5""")
    rows_dma_setup(k, 5, 6)
    tau_to_ts(k, 25, 26)
    k(f"""s_mul_i32 s32, s26, 18432
s_mul_i32 s33, s20, 18432
s_add_u32 s33, s33, {XO}
s_cmp_lg_u32 s46, 0
s_cbranch_scc1 L_k1_lt1
s_lshl_b32 s56, s47, 7
s_lshl2_add_u32 s62, s24, s20
s_mul_i32 s62, s62, {18*3456}
s_add_u32 s62, s62, s56
s_mul_i32 s3, s20, {8*3456}
s_add_u32 s56, s56, s3
s_lshl_b32 s60, s20, 10
s_and_b32 s3, s20, 1
s_lshl_b32 s3, s3, 2
v_lshrrev_b32 v7, 3, v1
v_and_b32 v13, 2, v7
v_or_b32 v13, s3, v13
v_and_b32 v14, 7, v1
v_xor_b32 v13, v13, v14
v_mul_u32_u24 v7, 3456, v7
v_lshl_add_u32 v16, v13, 4, v7
v_min_u32 v15, 17, v1
v_mul_u32_u24 v15, 3456, v15
s_waitcnt lgkmcnt(0)""")
    srd(k, 12, 6, 7, XH_SZ); srd(k, 16, 52, 53, 576*3456)
    def xload(tag, pf):
        k(f"""s_mov_b32 s37, s24
s_mov_b32 s40, 9
L_{tag}_x:
s_lshl_b32 s3, s37, 11
s_add_u32 m0, s3, s33
s_lshl_b32 s3, s37, 7
s_add_u32 s3, s3, s32
buffer_load_dwordx4 v5, s[12:15], s3 offen lds
s_add_u32 m0, m0, 1024
s_add_u32 s37, s37, 1
buffer_load_dwordx4 v6, s[12:15], s3 offen lds
s_cmp_lg_u32 s40, 8
s_cbranch_scc1 L_{tag}_np
{f'buffer_load_dword v125, v15, s[{pf}:{pf+3}], s62 offen' if PF2 else 's_nop 0'}
L_{tag}_np:
s_cmp_eq_u32 s37, 9
s_cselect_b32 s37, 0, s37
s_sub_u32 s40, s40, 1
s_cmp_lg_u32 s40, 0
s_cbranch_scc1 L_{tag}_x""")
    stamp(k, 1)
    xload('k1a', 16)
    stamp(k, 2)
    def j3blocks(n):
        for m in range(n): k(f"buffer_load_dwordx4 v16, s[16:19], s56 offen lds\ns_add_u32 m0, m0, 4096\ns_add_u32 s56, s56, {32*3456}")
    k(f"s_add_u32 m0, s60, {UP}")
    j3blocks(6)
    stamp(k, 3); k("s_waitcnt vmcnt(6)"); stamp(k, 4); k("s_barrier")
    j3blocks(4)
    k(f"s_barrier\ns_add_u32 m0, s60, {XO}")
    j3blocks(8)
    k("s_barrier\ns_waitcnt vmcnt(0)"); stamp(k, 6); k("s_barrier")
    if PROF: srd(k, 8, 4, 5, WS_END)
    endpgm(k)
    k(f"""L_k1_lt1:
s_cmp_eq_u32 s46, 1
s_cselect_b32 s18, {2048*578}, 0
s_mov_b32 s30, s18
s_and_b32 s3, s47, 3
s_lshl_b32 s3, s3, 4
s_and_b32 s56, s47, 28
s_add_u32 s56, s56, s20
s_lshl_b32 s56, s56, 6
s_add_u32 s56, s56, s3
s_mul_i32 s56, s56, 578
s_mov_b32 s62, s56
s_mul_i32 s60, s20, 9216
v_lshlrev_b32 v15, 7, v1
s_mov_b32 s3, {hex((1<<32)//36+1)}""")
    for m in range(9):
        k(f"v_add_u32 v13, {64*m}, v1\nv_mul_hi_u32 v14, v13, s3\nv_lshl_add_u32 v14, v14, 1, 2\nv_lshl_add_u32 v{16+m}, v13, 4, v14")
    k("""s_waitcnt lgkmcnt(0)
s_mov_b32 s16, s48
s_mov_b32 s17, s49
s_mov_b32 s19, 0x20000
s_mov_b32 s28, s50
s_mov_b32 s29, s51
s_mov_b32 s31, 0x20000""")
    srd(k, 12, 6, 7, XH_SZ)
    if PF2: k("buffer_load_dword v124, v15, s[16:19], s62 offen")
    stamp(k, 1)
    xload('k1b', 28)
    stamp(k, 2)
    def t1d(m0, m1, sr):
        for m in range(m0, m1): k(f"buffer_load_dwordx4 v{16+m}, s[{sr}:{sr+3}], s56 offen lds\ns_add_u32 m0, m0, 1024")
    k(f"s_add_u32 m0, s60, {UP}")
    t1d(0, 6, 16)
    stamp(k, 3); k("s_waitcnt vmcnt(6)"); stamp(k, 4); k("s_barrier")
    t1d(6, 9, 16)
    k(f"s_barrier\ns_add_u32 m0, s60, {XO}")
    t1d(0, 9, 28)
    k("s_barrier\ns_waitcnt vmcnt(0)"); stamp(k, 6); k("s_barrier")
    if PROF: srd(k, 8, 4, 5, WS_END)
    endpgm(k)
    k(f"""L_k1_compute:
s_mov_b32 s32, s20
s_mov_b32 s33, 0
s_mov_b32 s34, 1
s_add_u32 s38, s22, s20
v_lshrrev_b32 v8, 2, v2
v_lshlrev_b32 v8, 3, v8
v_and_b32 v9, 3, v2
v_add_u32 v8, v8, v9
v_lshlrev_b32 v9, 3, v3
v_cvt_f32_u32 v9, v9
s_mov_b32 s35, 0""")
    stamp(k, 1)
    k("L_p1_pass:")
    trig_loop(k, 'p1_tr1', 9)
    k(f"""s_add_u32 s35, s35, 1
s_cmp_gt_u32 s35, s21
s_cbranch_scc1 L_p1_trig_done
s_mov_b32 s32, 4
s_mov_b32 s33, s20
s_mov_b32 s34, 4
s_mov_b32 s38, s27
s_branch L_p1_pass
L_p1_trig_done:""")
    stamp(k, 2)
    rows_read_addr(k, 10, 11)
    k("s_waitcnt vmcnt(0) lgkmcnt(0)")
    srd(k, 8, 4, 5, WS_END)
    k("s_barrier")
    stamp(k, 4)
    rows_read(k, 10, 11)
    k(f"""s_cmp_eq_u32 s24, 0
s_mov_b32 s36, {fl(SC)}
s_cselect_b32 s3, {fl(1/24)}, s36
s_cselect_b32 s37, 0, s36
v_mov_b32 v8, s36
v_mov_b32 v9, s3
v_mov_b32 v10, s37
v_cmp_eq_u32 vcc, 0, v3
v_cndmask_b32 v9, v8, v9, vcc
v_cndmask_b32 v10, v8, v10, vcc
s_mov_b32 s37, {hex(XH0)}
s_waitcnt lgkmcnt(0)
s_barrier""")
    stamp(k, 5)
    emit(k, sym_gemm(False))
    stamp(k, 6)
    def fin(slot, sc01, dst):
        a = ACC + 8*slot
        for r in range(4): k(f"v_{'add' if r < 2 else 'sub'}_f32 v{a+r}, v{a+r}, v{a+4+r}")
        for r in range(4): k(f"v_mul_f32 v{a+r}, {sc01[r] if (slot == 0 and r < 2) else 's36'}, v{a+r}")
        k(f"v_cvt_pk_bf16_f32 v{dst}, v{a}, v{a+1}\nv_cvt_pk_bf16_f32 v{dst+1}, v{a+2}, v{a+3}")
    for slot in range(5): fin(slot, ('v9', 'v9'), ACC+8*slot+4)
    y2_exchange_store(k, 'p1', 37, XO + 65*1024, ST, lambda s: ACC+8*s+4)
    k(f"""s_cmp_lg_u32 s24, 1
s_cbranch_scc1 L_p1_nostat""")
    k.optional(True)
    k("v_mov_b32 v120, 0x3f803f80\nv_mov_b32 v121, 0x3f803f80\nv_mov_b32 v122, 0x3f803f80\nv_mov_b32 v123, 0x3f803f80")
    for kk in range(18):
        x = vr(XB+4*kk)
        k(f"{MF} v[88:91], v[120:123], {x}, {'0' if kk == 0 else 'v[88:91]'}")
        k(f"{MF} v[96:99], {x}, {x}, {'0' if kk == 0 else 'v[96:99]'}")
    ss_addr(k, 38, SS0)
    k(f"""v_and_b32 v11, 3, v2
v_cmp_eq_u32 vcc, 1, v11
v_cndmask_b32 v12, v96, v97, vcc
v_cmp_eq_u32 vcc, 2, v11
v_cndmask_b32 v12, v12, v98, vcc
v_cmp_eq_u32 vcc, 3, v11
v_cndmask_b32 v12, v12, v99, vcc
v_mul_f32 v13, v88, v88
v_mul_f32 v13, {fl(1/576)}, v13
v_sub_f32 v12, v12, v13
v_max_f32 v12, 0, v12
v_lshrrev_b32 v11, 2, v2
v_cmp_eq_u32 vcc, v11, v3
v_lshlrev_b32 v13, 4, v2
s_and_saveexec_b64 s[40:41], vcc
buffer_store_dword v12, v13, s[8:11], s38 offen
s_mov_b64 exec, s[40:41]""")
    k.optional(False)
    k("L_p1_nostat:")
    stamp(k, 7)
    k("""s_barrier
s_cmp_eq_u32 s46, 1
s_cbranch_scc1 L_k1_t1
s_cmp_eq_u32 s46, 2
s_cbranch_scc1 L_k1_ft""")
    stamp(k, 8)
    k(f"""v_lshrrev_b32 v11, 2, v2           ; r
v_and_b32 v12, 2, v11
v_and_b32 v13, 1, v3
v_lshl_or_b32 v12, v13, 2, v12     ; 2f
s_lshl_b32 s3, s20, 1
v_xor_b32 v12, s3, v12
v_lshlrev_b32 v12, 4, v12
v_lshl_add_u32 v12, v11, 7, v12
v_and_b32 v13, 3, v2
v_lshl_add_u32 v12, v13, 3, v12
v_lshl_add_u32 v12, v3, 10, v12
v_add_u32 v11, {UP}, v12
v_add_u32 v12, {XO}, v12""")
    def trd(r, kk):
        for hh in range(2):
            va, o = ('v11', kk*4096) if kk < 10 else ('v12', (kk-10)*4096)
            r(f"ds_read_b64_tr_b16 {vr(XB+4*kk+2*hh,2)}, {va} offset:{o + 512*hh}")
    adr = Rec()
    adr(f"""s_lshl2_add_u32 s3, s47, s20
s_lshl_b32 s3, s3, 4
v_add_u32 v5, s3, v2
s_mov_b32 s3, {hex((1<<32)//18+1)}
v_mul_hi_u32 v6, v5, s3
v_mul_u32_u24 v7, 18, v6
v_sub_u32 v7, v5, v7               ; dd
v_lshrrev_b32 v5, 5, v6            ; which
v_and_b32 v8, 1, v6                ; hl
v_bfe_u32 v13, v6, 1, 4
v_mul_u32_u24 v13, {WQ_HP//16}, v13
v_lshlrev_b32 v14, 1, v5
v_add_u32 v14, -2, v14
v_cmp_eq_u32 vcc, 0, v5
v_mov_b32 v15, 0x5a
v_cndmask_b32 v14, v14, v15, vcc
v_add_u32 v14, v14, v8
v_lshl_add_u32 v14, v14, 6, v7
v_mov_b32 v15, 5
v_cndmask_b32 v15, v15, 2, vcc
v_add_u32 v6, -16, v7              ; x
v_lshl_add_u32 v128, v8, 2, v6
v_and_b32 v5, 1, v5
v_lshl_add_u32 v128, v5, 3, v128
v_lshlrev_b32 v5, 3, v8
v_lshl_add_u32 v5, v6, 2, v5
v_add_u32 v5, 2, v5
v_cndmask_b32 v128, v128, v5, vcc
v_add_u32 v128, 0x100, v128
v_cmp_lt_u32 vcc, 15, v7
v_cndmask_b32 v14, v14, v128, vcc
v_cndmask_b32 v15, v15, 5, vcc
v_add_u32 v14, v14, v13
v_lshl_add_u32 v14, v3, 4, v14
v_lshlrev_b32 v14, 4, v14
v_lshlrev_b32 v15, 10, v15
s_lshl_b32 s39, s24, 1
v_mad_u32_u24 v5, v15, s39, v14
v_add_u32 v6, v5, v15
s_lshr_b32 s39, s27, 1
v_mad_u32_u24 v7, v15, s39, v14
s_and_b32 s3, s27, 1
s_lshl_b32 s3, s3, 3
s_mov_b32 s38, {hex(WQ)}
s_add_u32 s39, s3, s38""")
    emit(k, sym_gemm(False, adr.l, xrd=trd))
    stamp(k, 9)
    for p in range(2):
        d = ACC + 16*p + 4
        fin(2*p, ('v9', 'v10'), d); fin(2*p+1, None, d+2)
        k(f"buffer_store_dwordx4 {vr(d)}, v{5+p}, s[8:11], s38 offen {ST}")
    def body():
        fin(4, None, ACC+36)
        k(f"buffer_store_dwordx2 {vr(ACC+36,2)}, v7, s[8:11], s39 offen {ST}")
    opt_slot(k, 'j3', 4, body)
    k("s_branch L_k1_end")
    k(f"""L_k1_ft:
s_add_u32 s3, s22, s20
s_mul_i32 s38, s3, 9216
s_add_u32 s38, s38, {hex(FT)}
s_mul_i32 s39, s27, 9216
s_add_u32 s39, s39, {hex(FT)}
s_lshl_b32 s3, s20, 10
v_add_u32 v11, s3, v4""")
    for kk in range(9): k(f"ds_read_b128 {vr(XB+4*kk)}, v11 offset:{kk*5120}")
    for kk in range(9):
        k(f"buffer_store_dwordx4 {vr(XB+4*kk)}, v4, s[8:11], s38 offen offset:{(kk % 4)*1024}")
        if kk % 4 == 3: k("s_add_u32 s38, s38, 4096")
    k("s_cmp_lg_u32 s20, 0\ns_cbranch_scc1 L_k1_end\ns_cmp_eq_u32 s21, 0\ns_cbranch_scc1 L_k1_end")
    for kk in range(9): k(f"ds_read_b128 {vr(XB+36+4*kk)}, v4 offset:{kk*5120+4096}")
    for kk in range(9):
        k(f"buffer_store_dwordx4 {vr(XB+36+4*kk)}, v4, s[8:11], s39 offen offset:{(kk % 4)*1024}")
        if kk % 4 == 3: k("s_add_u32 s39, s39, 4096")
    k("s_branch L_k1_end")
    k(f"""L_k1_t1:
v_mul_u32_u24 v11, 576, v2
s_lshl_b32 s3, s20, 2
v_add_u32 v13, s3, v3
v_lshl_add_u32 v11, v13, 3, v11
v_lshl_add_u32 v13, v13, 2, 1
v_add_u32 v12, {XO}, v11
v_add_u32 v11, {UP}, v11
v_lshlrev_b32 v13, 13, v13
v_lshl_add_u32 v13, v2, 4, v13     ; k*8192 + i*16
s_and_b32 s3, s47, 3
s_lshl_b32 s38, s3, 11
s_lshr_b32 s3, s47, 2
s_lshl_b32 s3, s3, 8
s_add_u32 s38, s38, s3
s_add_u32 s38, s38, {hex(WT)}
s_mov_b32 s39, s38
v_lshlrev_b32 v14, 4, v2
v_add_u32 v15, {(256+3)*8192}, v13
s_cmp_eq_u32 s20, 1
s_cselect_b32 s3, 3, 7
v_cmp_eq_u32 vcc, s3, v3
v_cndmask_b32 v14, v15, v14, vcc
s_mov_b32 s40, 0x05040100
s_mov_b32 s41, 0x07060302""")
    def t1rd(it):
        b = XB + 16*(it % 2)
        for r in range(4):
            k(f"ds_read_b64 {vr(b+4*r,2)}, v11 offset:{r*9216 + 128*it}\nds_read_b64 {vr(b+4*r+2,2)}, v12 offset:{r*9216 + 128*it}")
    t1rd(0)
    for it in range(5):
        if it == 4: k("s_cmp_ge_u32 s20, 2\ns_cbranch_scc1 L_k1_end")
        if it + 1 < 5: t1rd(it+1)
        b = XB + 16*(it % 2)
        for x in range(4):
            o = XB + 32 + 4*((4*it + x) % 8)
            for r in range(4): k(f"v_perm_b32 v{o+r}, v{b+4*r+2+x//2}, v{b+4*r+x//2}, s{40 + x % 2}")
            if it == 4 and x == 3: k(f"buffer_store_dwordx4 {vr(o)}, v14, s[8:11], s39 offen {ST}")
            else: k(f"buffer_store_dwordx4 {vr(o)}, v13, s[8:11], s38 offen {ST}\ns_add_u32 s38, s38, {8192 if x < 3 else 61*8192}")
    k("L_k1_end:")
    endpgm(k)
    k("L_k1_exit:\ns_endpgm")
    return k

def role_P2(k):
    RAW, SSV = 8, 24
    C1, S1, N1, TW1, TW2 = 32, 40, 48, 56, 72
    XR = lambda c: 88 + 16*c
    XI = lambda c: 96 + 16*c
    AC = lambda c: 120 + 16*c
    PK = lambda c: 152 + 8*c
    WR = lambda c: 168 + 16*c
    WI = lambda c: 176 + 16*c
    TM = lambda c: 200 + 4*c
    TMP = 208
    DAT = lambda c: 32*c
    F2, F4 = 64, 88
    L_X1, L_F1, L_F2, L_U = 0, 16384, 40960, 47104
    k("s_load_dwordx2 s[4:5], s[0:1], 64")
    lane_setup(k)
    k(f"""s_mov_b32 s23, s2                  ; jp
s_lshr_b32 s25, s20, 1             ; j2
s_and_b32 s26, s20, 1              ; t
s_lshl_b32 s28, s20, 11
s_add_u32 s30, s28, s42            ; SS
s_lshl_b32 s29, s23, 14
s_mul_i32 s33, s23, {JP_ST}
s_lshl_b32 s3, s20, 12
s_add_u32 s33, s33, s3
s_add_u32 s44, s33, s40
s_add_u32 s33, s33, s41
s_add_u32 s29, s29, s28
s_add_u32 s29, s29, {hex(WT)}
s_add_u32 s34, s29, 8192""")
    FA, BA, G4 = TMP+8, TMP+9, TMP+10
    c1 = Rec()
    c1(f"""s_lshl_b32 s3, s20, 4
v_add_u32 v{FA}, s3, v2
v_cvt_f32_u32 v{FA}, v{FA}
v_mul_f32 v{FA}, {fl(1/64)}, v{FA}
v_lshlrev_b32 v{G4}, 2, v3
v_cvt_f32_u32 v{G4}, v{G4}
v_mul_f32 v{BA}, v{FA}, v{G4}""")
    for ks in range(2):
        for q in range(4):
            for h in range(2):
                u = 2*q + h; cst = 32*ks + 16*(u//4) + u % 4
                c1(f"v_fmamk_f32 v{TMP+h}, v{FA}, {fl(float(cst))}, v{BA}")
            c1(f"""v_cos_f32 v{TMP+2}, v{TMP}
v_cos_f32 v{TMP+3}, v{TMP+1}
v_sin_f32 v{TMP+4}, v{TMP}
v_sin_f32 v{TMP+5}, v{TMP+1}
v_cvt_pk_bf16_f32 v{C1+4*ks+q}, v{TMP+2}, v{TMP+3}
v_cvt_pk_bf16_f32 v{S1+4*ks+q}, v{TMP+4}, v{TMP+5}
v_cvt_pk_bf16_f32 v{N1+4*ks+q}, -v{TMP+4}, -v{TMP+5}""")
    emit(k, c1.l)
    k("s_waitcnt lgkmcnt(0)")
    srd(k, 8, 4, 5, WS_END)
    for h in range(2): k(f"buffer_load_dwordx4 {vr(SSV+4*h)}, v4, s[8:11], s30 offen offset:{1024*h}")
    for v in range(4): k(f"buffer_load_dwordx4 {vr(RAW+4*v)}, v4, s[8:11], s44 offen offset:{1024*v}")
    for c in range(2):
        for t in range(2): k(f"buffer_load_dwordx4 {vr(WI(c)+4*t)}, v4, s[8:11], s{(29,34)[c]} offen offset:{1024*t}")
    stamp(k, 1)
    k(f"s_mul_i32 s3, s20, 6144\nv_add_u32 v7, s3, v4")
    for ks in range(2):
        for kind, b in enumerate((C1, S1, N1)):
            k(f"ds_write_b128 v7, {vr(b+4*ks)} offset:{L_F1 + (kind*2+ks)*1024}")
    k(f"""s_lshl_b32 s3, s25, 4
v_add_u32 v{TMP+11}, s3, v2
v_cvt_f32_u32 v{TMP+11}, v{TMP+11}
v_mul_f32 v{TMP+11}, {fl(1/32)}, v{TMP+11}
s_lshl_b32 s3, s26, 4
v_cvt_f32_u32 v{TMP+12}, s3
v_add_f32 v{TMP+12}, v{TMP+12}, v{G4}
v_mul_f32 v{TMP+12}, v{TMP+12}, v{TMP+11}
s_lshl_b32 s3, s25, 10
s_lshl_b32 s31, s26, 3
s_add_u32 s3, s3, s31
v_add_u32 v7, s3, v4               ; j2*1024 + lane*16 + t*8""")
    P0 = PK(0)
    for q in range(2):
        for h in range(2):
            k(f"v_fmamk_f32 v{TMP+h}, v{TMP+11}, {fl(float(2*q+h))}, v{TMP+12}")
        k(f"""v_cos_f32 v{TMP+2}, v{TMP}
v_cos_f32 v{TMP+3}, v{TMP+1}
v_sin_f32 v{TMP+4}, v{TMP}
v_sin_f32 v{TMP+5}, v{TMP+1}
v_cvt_pk_bf16_f32 v{P0+q}, v{TMP+2}, v{TMP+3}
v_cvt_pk_bf16_f32 v{P0+2+q}, v{TMP+4}, v{TMP+5}
v_cvt_pk_bf16_f32 v{P0+4+q}, -v{TMP+4}, -v{TMP+5}""")
    for kind in range(3): k(f"ds_write_b64 v7, {vr(P0+2*kind, 2)} offset:{L_F2 + kind*2048}")
    k(f"v_mul_f32 v{FA}, {fl(1/32)}, v{FA}\nv_mul_f32 v{BA}, {fl(1/32)}, v{BA}")
    for e in range(8):
        cst = 16*(e//4) + e % 4
        k(f"v_fmamk_f32 v{TMP+e%2}, v{FA}, {fl(float(cst))}, v{BA}\nv_cos_f32 v{TW1+e}, v{TMP+e%2}\nv_sin_f32 v{TW1+8+e}, v{TMP+e%2}")
    tw2 = Rec()
    tw2(f"""s_lshl_b32 s3, s20, 4
v_cvt_f32_u32 v{TMP+12}, s3
v_add_f32 v{TMP+12}, v{TMP+12}, v{G4}
v_cvt_f32_u32 v{TMP+11}, v2""")
    for t in range(2):
        tw2(f"""v_add_f32 v{FA}, {fl(16.0*t)}, v{TMP+11}
v_mul_f32 v{FA}, {fl(1/2048)}, v{FA}
v_mul_f32 v{BA}, v{FA}, v{TMP+12}""")
        for r in range(4):
            e = 4*t + r
            tw2(f"v_fmamk_f32 v{TMP+e%2}, v{FA}, {fl(float(r))}, v{BA}\nv_cos_f32 v{TW2+e}, v{TMP+e%2}\nv_sin_f32 v{TW2+8+e}, v{TMP+e%2}")
    emit(k, tw2.l)
    stamp(k, 2)
    k(f"""s_cmp_eq_u32 s23, 0
s_cselect_b32 s31, 0, 0xffff0000
s_mov_b32 s32, {fl(2048.0*2048.0/576)}
v_mov_b32 v{TMP+15}, {fl(1e-5*2048*2048)}
s_lshl_b32 s3, s20, 10
v_add_u32 v{TMP+14}, s3, v4""")
    for u in range(8):
        k(f"v_fma_f32 v{SSV+u}, v{SSV+u}, s32, v{TMP+15}\nv_rsq_f32 v{SSV+u}, v{SSV+u}")
    for c in range(2):
        for u in range(8):
            k(f"v_lshlrev_b32 v{XR(c)+u}, 16, v{RAW+2*u+c}\nv_and_b32 v{XI(c)+u}, {'s31' if c == 0 else '0xffff0000'}, v{RAW+2*u+c}")
        for q in range(4):
            for h in range(2):
                u = 2*q+h
                k(f"v_mul_f32 v{TMP+h}, v{XR(c)+u}, v{SSV+u}\nv_mul_f32 v{TMP+2+h}, v{XI(c)+u}, v{SSV+u}")
            k(f"v_cvt_pk_bf16_f32 v{PK(c)+q}, v{TMP}, v{TMP+1}\nv_cvt_pk_bf16_f32 v{PK(c)+4+q}, v{TMP+2}, v{TMP+3}")
        k(f"ds_write_b128 v{TMP+14}, {vr(PK(c))} offset:{L_X1+8192*c}\nds_write_b128 v{TMP+14}, {vr(PK(c)+4)} offset:{L_X1+8192*c+4096}")
    k("s_waitcnt lgkmcnt(0)\ns_barrier")
    stamp(k, 3)
    dat = lambda c, pl, ks, t: ar(DAT(c) + 16*pl + 4*(2*ks+t))
    def rd1(c):
        r = Rec()
        for t in range(2):
            for ks in range(2):
                for pl in range(2):
                    r(f"ds_read_b128 {dat(c, pl, ks, t)}, v4 offset:{L_X1 + 8192*c + 4096*pl + 1024*(2*ks+t)}")
        return r.l
    AR = lambda c, t: vr(AC(c) + 4*t)
    AI = lambda c, t: vr(AC(c) + 8 + 4*t)
    def st1(c):
        r = Rec()
        for t in range(2):
            for ks in range(2):
                r(f"{MF} {AR(c,t)}, {dat(c,0,ks,t)}, {vr(C1+4*ks)}, {'0' if ks == 0 else AR(c,t)}")
                r(f"{MF} {AI(c,t)}, {dat(c,1,ks,t)}, {vr(C1+4*ks)}, {'0' if ks == 0 else AI(c,t)}")
                r(f"{MF} {AR(c,t)}, {dat(c,1,ks,t)}, {vr(S1+4*ks)}, {AR(c,t)}")
                r(f"{MF} {AI(c,t)}, {dat(c,0,ks,t)}, {vr(N1+4*ks)}, {AI(c,t)}")
        return r.l
    def cmul(c, cr, ci, conj):
        r = Rec(); T = TM(c)
        for q in range(4):
            for h in range(2):
                e = 2*q + h; xr = AC(c) + e; xi = AC(c) + 8 + e
                r(f"v_mul_f32 v{T+h}, v{xr}, v{cr+e}\nv_mul_f32 v{T+2+h}, v{xi}, v{cr+e}")
                if conj: r(f"v_fmac_f32 v{T+h}, v{xi}, v{ci+e}\nv_fma_f32 v{T+2+h}, -v{xr}, v{ci+e}, v{T+2+h}")
                else: r(f"v_fma_f32 v{T+h}, -v{xi}, v{ci+e}, v{T+h}\nv_fmac_f32 v{T+2+h}, v{xr}, v{ci+e}")
            r(f"v_cvt_pk_bf16_f32 v{PK(c)+q}, v{T}, v{T+1}\nv_cvt_pk_bf16_f32 v{PK(c)+4+q}, v{T+2}, v{T+3}")
        return r.l
    C2 = lambda t: ar(F2+4*t); S2 = lambda t: ar(F2+8+4*t); N2 = lambda t: ar(F2+16+4*t)
    def st2(c):
        r = Rec(); PR, PI = vr(PK(c)), vr(PK(c)+4)
        for t in range(2):
            r(f"{MF} {AR(c,t)}, {C2(t)}, {PR}, 0\n{MF} {AI(c,t)}, {C2(t)}, {PI}, 0")
            r(f"{MF} {AR(c,t)}, {S2(t)}, {PI}, {AR(c,t)}\n{MF} {AI(c,t)}, {N2(t)}, {PR}, {AI(c,t)}")
        return r.l
    def st3(c):
        r = Rec(); PR, PI = vr(PK(c)), vr(PK(c)+4)
        for t in range(2):
            r(f"{MF} {AR(c,t)}, {PR}, {C2(t)}, 0\n{MF} {AI(c,t)}, {PI}, {C2(t)}, 0")
            r(f"{MF} {AR(c,t)}, {PI}, {N2(t)}, {AR(c,t)}\n{MF} {AI(c,t)}, {PR}, {S2(t)}, {AI(c,t)}")
        return r.l
    def wru(c):
        r = Rec()
        for pl in range(2):
            for t in range(2): r(f"ds_write_b64 v7, {vr(PK(c)+4*pl+2*t, 2)} offset:{L_U + 8192*c + pl*4096 + t*2048}")
        return r.l
    f4 = lambda mt, kind, ks: ar(F4 + 24*mt + 8*kind + 4*ks)
    misc = Rec()
    for kind in range(3):
        for t in range(2): misc(f"ds_read_b128 {ar(F2+8*kind+4*t)}, v4 offset:{L_F2 + kind*2048 + t*1024}")
    for c in range(2):
        for e in range(8): misc(f"v_lshlrev_b32 v{WR(c)+e}, 16, v{WI(c)+e}\nv_and_b32 v{WI(c)+e}, 0xffff0000, v{WI(c)+e}")
    f4r = Rec()
    f4r(f"s_mul_i32 s3, s25, 12288\nv_add_u32 v{TMP+14}, s3, v4")
    for mt in range(2):
        for kind in range(3):
            for ks in range(2): f4r(f"ds_read_b128 {f4(mt,kind,ks)}, v{TMP+14} offset:{L_F1 + mt*6144 + (kind*2+ks)*1024}")
    def mv(m, v, lead=2):
        return merge(m, v, ratio=lead)
    emit(k, rd1(0)); emit(k, rd1(1))
    emit(k, merge(st1(0), misc.l))
    emit(k, mv(st1(1), cmul(0, TW1, TW1+8, True)))
    stamp(k, 4)
    emit(k, mv(st2(0), cmul(1, TW1, TW1+8, True)))
    emit(k, f4r.l)
    emit(k, mv(st2(1), cmul(0, WR(0), WI(0), False)))
    emit(k, mv(st3(0), cmul(1, WR(1), WI(1), False)))
    emit(k, mv(st3(1), cmul(0, TW2, TW2+8, False)))
    emit(k, wru(0))
    emit(k, cmul(1, TW2, TW2+8, False))
    emit(k, wru(1))
    stamp(k, 5)
    k(f"""s_lshl_b32 s3, s26, 11
v_add_u32 v{TMP+14}, s3, v4
s_or_b32 s31, s31, 0xffff
s_waitcnt lgkmcnt(0)
s_barrier""")
    stamp(k, 6)
    ud = lambda c, pl, ks: ar(DAT(c) + 8*pl + 4*ks)
    for c in range(2):
        for ks in range(2):
            for pl in range(2):
                k(f"ds_read_b128 {ud(c,pl,ks)}, v{TMP+14} offset:{L_U + 8192*c + pl*4096 + ks*1024}")
    def st4(c, mt):
        r = Rec(); r_, i_ = vr(XR(c)+4*mt), vr(XI(c)+4*mt)
        for ks in range(2):
            r(f"{MF} {r_}, {f4(mt,0,ks)}, {ud(c,0,ks)}, {r_}\n{MF} {i_}, {f4(mt,0,ks)}, {ud(c,1,ks)}, {i_}")
            r(f"{MF} {r_}, {f4(mt,2,ks)}, {ud(c,1,ks)}, {r_}\n{MF} {i_}, {f4(mt,1,ks)}, {ud(c,0,ks)}, {i_}")
        return r.l
    OUT = PK(0)
    def fin(mt):
        r = Rec()
        for v in range(2*mt, 2*mt+2):
            for u in (2*v, 2*v+1):
                r(f"v_cvt_pk_bf16_f32 v{OUT+2*u}, v{XR(0)+u}, v{XI(0)+u}\nv_bfi_b32 v{OUT+2*u}, s31, v{OUT+2*u}, v{RAW+2*u}")
                r(f"v_cvt_pk_bf16_f32 v{OUT+2*u+1}, v{XR(1)+u}, v{XI(1)+u}")
            r(f"buffer_store_dwordx4 {vr(OUT+4*v)}, v4, s[8:11], s33 offen offset:{1024*v}")
        return r.l
    emit(k, st4(0, 0)); emit(k, st4(1, 0)); emit(k, st4(0, 1))
    emit(k, merge(st4(1, 1), fin(0)))
    stamp(k, 7)
    emit(k, fin(1))
    endpgm(k)

def role_J2(k, first):
    k("""s_load_dwordx2 s[4:5], s[0:1], 64
s_load_dwordx2 s[6:7], s[0:1], 40""")
    lane_setup(k)
    k(f"""s_sub_u32 s3, s2, {first}
s_and_b32 s23, s3, 7
s_lshr_b32 s24, s3, 3
s_cmp_eq_u32 s24, 8
s_cselect_b32 s24, s23, s24        ; cb
s_cselect_b32 s23, 8, s23
s_lshl2_add_u32 s25, s23, s20      ; mt""")
    cb_setup(k, 24)
    k(f"""s_sub_u32 s3, s25, 32
s_lshr_b32 s28, s3, 1
s_lshl_b32 s28, s28, 3
s_and_b32 s3, s25, 1
s_add_u32 s28, s28, s3
s_mul_i32 s29, s25, 18
s_cmp_ge_u32 s25, 32
s_cselect_b64 vcc, -1, 0""")
    for rho in range(2):
        k(f"""v_lshrrev_b32 v10, 3, v1
v_add_u32 v10, {8*rho}, v10        ; i
v_add_u32 v11, s29, v10
v_lshrrev_b32 v12, 2, v10
v_lshl_add_u32 v12, v12, 1, s28
v_bfe_u32 v13, v10, 1, 1
v_lshl_add_u32 v12, v12, 1, v13
v_mul_u32_u24 v12, 18, v12
v_and_b32 v13, 1, v10
v_add3_u32 v12, v12, v13, 16
v_cndmask_b32 v11, v11, v12, vcc
v_mul_u32_u24 v{5+rho}, 1152, v11""")
    rows_dma_setup(k, 5, 6)
    k(f"""s_mul_i32 s36, s20, 18432
s_add_u32 s36, s36, {XO}
s_mov_b32 s37, s24
s_mov_b32 s40, 9
s_waitcnt lgkmcnt(0)""")
    srd(k, 8, 4, 5, WS_END); srd(k, 12, 6, 7, 576*1152)
    k(f"""L_j2_x:
s_lshl_b32 s3, s37, 11
s_add_u32 m0, s3, s36
s_lshl_b32 s3, s37, 7
buffer_load_dwordx4 v5, s[12:15], s3 offen lds
s_add_u32 m0, m0, 1024
s_add_u32 s37, s37, 1
buffer_load_dwordx4 v6, s[12:15], s3 offen lds
s_cmp_eq_u32 s37, 9
s_cselect_b32 s37, 0, s37
s_sub_u32 s40, s40, 1
s_cmp_lg_u32 s40, 0
s_cbranch_scc1 L_j2_x""")
    k(f"""s_add_u32 s3, s22, s20
s_mul_i32 s30, s3, 9216
s_add_u32 s30, s30, {hex(FT)}
s_lshl_b32 m0, s20, 10""")
    for kk in range(9):
        k(f"buffer_load_dwordx4 v4, s[8:11], s30 offen lds\ns_add_u32 s30, s30, 1024\ns_add_u32 m0, m0, 5120")
    k(f"""s_mul_i32 s30, s27, 9
s_add_u32 s30, s30, s20
s_lshl_b32 s30, s30, 10
s_add_u32 s30, s30, {hex(FT)}
s_mul_i32 s3, s20, 5120
s_add_u32 m0, s3, 4096""")
    for m in range(3):
        if m == 2: k("s_cmp_lg_u32 s20, 0\ns_cbranch_scc1 L_j2_f4")
        k(f"buffer_load_dwordx4 v4, s[8:11], s30 offen lds\ns_add_u32 s30, s30, 4096\ns_add_u32 m0, m0, 20480")
    k("L_j2_f4:")
    rows_read_addr(k, 10, 11)
    k(f"""v_and_b32 v8, 1, v2
v_lshlrev_b32 v8, 4, v8
v_mov_b32 v9, 0x3f80
v_lshlrev_b32 v8, v8, v9
v_lshrrev_b32 v9, 1, v2
v_lshlrev_b32 v12, 1, v3
v_cmp_eq_u32 vcc, v9, v12
v_cndmask_b32 v130, 0, v8, vcc
v_add_u32 v12, 1, v12
v_cmp_eq_u32 vcc, v9, v12
v_cndmask_b32 v131, 0, v8, vcc
v_mov_b32 v128, 0
v_mov_b32 v129, 0
v_mov_b32 v132, 0
v_mov_b32 v133, 0
v_and_b32 v8, 2, v2
v_cmp_eq_u32 vcc, 0, v8
v_mov_b32 v9, -1.0
v_cndmask_b32 v14, v9, 1.0, vcc
s_cmp_eq_u32 s24, 0
s_mov_b32 s36, {fl(SC)}
s_cselect_b32 s3, {fl(1/24)}, s36
v_mov_b32 v12, s36
v_mov_b32 v13, s3
v_cmp_gt_u32 vcc, 2, v2
v_cndmask_b32 v13, v12, v13, vcc
s_lshr_b32 s37, s25, 1
s_mul_i32 s37, s37, 5120
s_and_b32 s3, s25, 1
s_lshl3_add_u32 s37, s3, s37
s_mul_i32 s3, s24, {90*1024}
s_add_u32 s37, s37, s3
s_waitcnt vmcnt(0)
s_barrier""")
    stamp(k, 3)
    def xrd(r, kk): r(f"ds_read_b128 {vr(XB+4*kk)}, v{(10, 11)[kk % 2]} offset:{(kk//2)*2048}")
    emit(k, sym_gemm(True, xrd=xrd))
    for slot in range(5):
        def body():
            a = ACC + 8*slot
            k(f"""{f's_add_u32 s38, s22, {slot}' if slot < 4 else 's_mov_b32 s38, s27'}
s_lshr_b32 s3, s38, 2
s_lshl_b32 s3, s3, 11
s_bitcmp1_b32 s38, 1
s_cselect_b64 vcc, -1, 0
v_cndmask_b32 v15, v10, v11, vcc
v_add_u32 v15, s3, v15
ds_read_b128 v[136:139], v15
s_add_u32 s39, s37, {slot*1024}
s_add_u32 s33, s39, {hex(WOT)}
s_add_u32 s39, s39, {hex(WOH)}""")
            for r in range(4): k(f"v_fma_f32 v{a+r}, v{a+4+r}, v14, v{a+r}")
            for r in range(4): k(f"v_mul_f32 v{a+r}, {'v13' if slot == 0 else 'v12'}, v{a+r}")
            k(f"""v_cvt_pk_bf16_f32 v{a+4}, v{a}, v{a+1}
v_cvt_pk_bf16_f32 v{a+5}, v{a+2}, v{a+3}
buffer_store_dwordx2 {vr(a+4,2)}, v4, s[8:11], s39 offen
{MF} v[140:143], v[136:139], v[130:133], 0
{MF} v[144:147], v[136:139], v[128:131], 0
s_bitcmp1_b32 s38, 0
s_cselect_b64 vcc, -1, 0""")
            for r in range(4): k(f"v_cndmask_b32 v{a+r}, v{140+r}, v{144+r}, vcc")
            k(f"""v_cvt_pk_bf16_f32 v{a+6}, v{a}, v{a+1}
v_cvt_pk_bf16_f32 v{a+7}, v{a+2}, v{a+3}
buffer_store_dwordx2 {vr(a+6,2)}, v4, s[8:11], s33 offen""")
        body()
    endpgm(k)

def role_J4(k, first):
    k("s_load_dwordx2 s[4:5], s[0:1], 64")
    lane_setup(k)
    k(f"""s_sub_u32 s21, s2, {first}
s_lshl2_add_u32 s21, s21, s20
s_mul_hi_u32 s22, s21, {hex((1<<32)//3+1)}
s_mul_i32 s3, s22, 3
s_sub_u32 s23, s21, s3
s_mul_i32 s23, s23, 6
s_add_u32 s24, s23, 6
s_lshr_b32 s3, s22, 1
s_lshl_b32 s3, s3, 5
s_and_b32 s25, s22, 1
s_lshl2_add_u32 s3, s25, s3
s_cmp_ge_u32 s22, 18
s_cselect_b32 s25, 576, 0
s_sub_u32 s3, s3, s25
v_lshrrev_b32 v8, 2, v2
v_and_b32 v9, 3, v2
v_lshl_add_u32 v8, v8, 3, v9
v_add_u32 v8, s3, v8
v_cvt_f32_i32 v10, v8
v_mul_f32 v10, {fl(1/576)}, v10
v_lshlrev_b32 v9, 2, v3
v_cvt_f32_u32 v9, v9
v_and_b32 v11, 1, v2
v_lshlrev_b32 v11, 31, v11
v_xor_b32 v11, {fl(1/24)}, v11
v_mov_b32 v12, {fl(1/24)}
v_cvt_pk_bf16_f32 v11, v11, v12
s_mov_b32 s26, {fl(SC)}
s_mul_i32 s27, s22, 18432
s_add_u32 s27, s27, {hex(GT)}
s_waitcnt lgkmcnt(0)""")
    srd(k, 8, 4, 5, WS_END)
    k(f"""L_j4_loop:
s_lshl_b32 s3, s23, 4
v_cvt_f32_u32 v13, s3
v_add_f32 v13, v13, v9
v_cmp_eq_f32 vcc, 0, v13
v_mul_f32 v13, v13, v10
v_fract_f32 v13, v13""")
    for q in range(4):
        k(f"""v_fmamk_f32 v14, v10, {fl(float(q))}, v13
v_cos_f32 v15, v14
v_sin_f32 v16, v14
v_mul_f32 v15, s26, v15
v_mul_f32 v16, s26, v16
v_cvt_pk_bf16_f32 v{20+q}, v15, -v16""")
    k(f"""v_cndmask_b32 v20, v20, v11, vcc
s_lshl_b32 s3, s23, 10
s_add_u32 s3, s3, s27
buffer_store_dwordx4 v[20:23], v4, s[8:11], s3 offen
s_add_u32 s23, s23, 1
s_cmp_lt_u32 s23, s24
s_cbranch_scc1 L_j4_loop""")
    endpgm(k)

def role_INIT(k, first):
    k("s_load_dwordx2 s[4:5], s[0:1], 64")
    lane_setup(k)
    k(f"""s_sub_u32 s21, s2, {first}
s_lshl_b32 s22, s21, 17
s_add_u32 s22, s22, {hex(KVP1)}
s_cmp_eq_u32 s21, 12
s_cselect_b32 s22, {hex(SS2)}, s22
s_cselect_b32 s23, 2, 32
s_cselect_b32 s24, 0, -1
v_mov_b32 v8, s24
v_mov_b32 v9, s24
v_mov_b32 v10, s24
v_mov_b32 v11, s24
v_lshlrev_b32 v7, 4, v0
s_waitcnt lgkmcnt(0)""")
    srd(k, 8, 4, 5, WS_END)
    k("""L_init_loop:
buffer_store_dwordx4 v[8:11], v7, s[8:11], s22 offen
s_add_u32 s22, s22, 4096
s_sub_u32 s23, s23, 1
s_cmp_lg_u32 s23, 0
s_cbranch_scc1 L_init_loop""")
    endpgm(k)

def kernel2():
    k = Kern("k2_kernel")
    prof_init(k, 2)
    k(f"""s_cmp_ge_u32 s2, 144
s_cbranch_scc1 L_k2_other
s_mov_b32 s40, {hex(XH0)}
s_mov_b32 s41, {hex(XH1)}
s_mov_b32 s42, {hex(SS0)}
L_p2_body:""")
    role_P2(k)
    k("""L_k2_other:
s_cmp_ge_u32 s2, 256
s_cbranch_scc1 L_k2_exit
s_cmp_ge_u32 s2, 243
s_cbranch_scc1 L_k2_init
s_cmp_ge_u32 s2, 216
s_cbranch_scc1 L_k2_j4""")
    role_J2(k, 144)
    k("L_k2_j4:")
    role_J4(k, 216)
    k("L_k2_init:")
    role_INIT(k, 243)
    k("L_k2_exit:\ns_endpgm")
    return k

def phi2(k, dst, acc, rs2, t, bcast=False):
    m = f"{vr(rs2,2)} op_sel_hi:[1,0]" if bcast else vr(rs2, 2)
    k(f"""v_pk_mul_f32 {vr(dst,2)}, {vr(acc,2)}, {m}
v_exp_f32_e64 v{t}, v{dst} clamp
v_exp_f32_e64 v{t+1}, v{dst+1} clamp
v_max_f32 v{dst}, s58, v{dst}
v_max_f32 v{dst+1}, s58, v{dst+1}
v_pk_fma_f32 {vr(dst,2)}, {vr(dst,2)}, s[56:57], {vr(t,2)}""")

P3D = int(os.environ.get('P3D', 6)); P3B = int(os.environ.get('P3B', 2))
def role_P3(k):
    A = lambda mt, kp: 16 + 8*kp + 4*mt
    AC = lambda t, mt: 160 + 8*t + 4*mt
    RS, RS2, RL2 = 208, 216, 224
    TMP = 228; PKD = 236
    RED = 128*1024; FIN = RED + 16384
    k("s_load_dwordx2 s[4:5], s[0:1], 64")
    lane_setup(k)
    k(f"""s_and_b32 s3, s2, 7
s_lshr_b32 s21, s2, 3
s_lshr_b32 s22, s3, 1
s_lshl_b32 s22, s22, 2
s_and_b32 s23, s21, 3
s_add_u32 s22, s22, s23            ; rb
s_and_b32 s23, s3, 1
s_lshl_b32 s23, s23, 3
s_lshr_b32 s21, s21, 2
s_add_u32 s23, s23, s21            ; hp
s_lshl2_add_u32 s24, s22, s20      ; pi
s_mul_i32 s25, s24, {2*TAU_ST}
s_lshl_b32 s31, s24, 8
s_add_u32 s26, s31, s40
s_add_u32 s27, s26, {JP_ST}
s_mul_i32 s28, s23, {WQ_HP}
s_lshl_b32 s43, s20, 10
s_add_u32 s28, s28, s43
s_add_u32 s28, s28, {hex(WQ)}
s_mov_b32 m0, s43
v_add_u32 v5, 0x10000, v4
v_mul_u32_u24 v6, {2*JP_ST}, v3
v_lshl_add_u32 v6, v2, 4, v6
v_cmp_eq_u32 vcc, 0, v3
v_mov_b32 v10, 0xffff
v_cndmask_b32 v10, -1, v10, vcc
s_mov_b32 s56, {fl(LN2)}
s_mov_b32 s57, {fl(LN2)}
s_mov_b32 s58, {fl(1e-6/LN2)}
s_waitcnt lgkmcnt(0)""")
    srd(k, 8, 4, 5, WS_END)
    st = {'m': 0}
    def loads(kp):
        out = []
        if kp < 18:
            out.append(f"buffer_load_dwordx4 {vr(A(0,kp))}, v6, s[8:11], s26 offen\ns_add_u32 s26, s26, {8*JP_ST}")
            out.append(f"buffer_load_dwordx4 {vr(A(1,kp))}, v6, s[8:11], s27 offen\ns_add_u32 s27, s27, {8*JP_ST}")
            lim = (5*(kp+1) + 3)//4
        else: lim = min(32, st['m'] + (32 - 23 + P3D - 1)//P3D)
        while st['m'] < lim:
            out.append(f"buffer_load_dwordx4 v4, s[8:11], s28 offen lds @tag=d{st['m']}\ns_add_u32 s28, s28, 4096\ns_add_u32 m0, m0, 4096"); st['m'] += 1
        return out
    def lds_rd(dst, f, va=('v4', 'v5')):
        o = f*1024
        return f"ds_read_b128 {dst}, {va[0]} offset:{o}" if o < 65536 else f"ds_read_b128 {dst}, {va[1]} offset:{o-65536}"
    WB = lambda kp, t: ar(20*(kp % 2) + 4*t)
    for kp in range(P3D): emit(k, loads(kp))
    stamp(k, 1)
    def dneed(kl): return (5*(min(kl, 17)+1) + 3)//4 - 1
    swp = lambda kp: [f"v_swap_b32 v{A(0,kp)+2}, v{A(0,kp)+4}", f"v_swap_b32 v{A(0,kp)+3}, v{A(0,kp)+5}"]
    k(f"WAITVM d{dneed(0)}\ns_barrier")
    for t in range(5): k(lds_rd(WB(0, t), t))
    emit(k, swp(0))
    for mt in range(2):
        b = TMP + 4*mt
        k(f"v_and_b32 v{b}, v10, v{A(mt,0)}\nv_mov_b32 v{b+1}, v{A(mt,0)+1}\nv_mov_b32 v{b+2}, v{A(mt,0)+2}\nv_mov_b32 v{b+3}, v{A(mt,0)+3}")
    covered = 0
    for kp in range(18):
        if kp + 1 < 18 and kp + 1 > covered:
            covered = min(17, kp + P3B)
            k(f"WAITVM d{dneed(covered)}\ns_barrier")
        if kp in (0, 8, 16): stamp(k, 2 + kp//8)
        m = []
        for t in range(5):
            for mt in range(2):
                m.append(f"{MF} {vr(AC(t,mt))}, {vr(A(mt,kp))}, {WB(kp,t)}, {'0' if kp == 0 else vr(AC(t,mt))}")
        for mt in range(2):
            x = vr(A(mt, kp)) if kp else vr(TMP + 4*mt)
            m.append(f"{MF} {vr(AC(5,mt))}, {x}, {x}, {'0' if kp == 0 else vr(AC(5,mt))}")
        side = [lds_rd(WB(kp+1, t), 5*(kp+1) + t) for t in range(5)] if kp + 1 < 18 else []
        side = merge(side, loads(kp + P3D)) if side else loads(kp + P3D)
        seq = merge(m[:10], side) + (swp(kp+1) if kp + 1 < 18 else []) + m[10:]
        emit(k, seq)
    assert st['m'] == 32
    stamp(k, 5)
    k("""v_and_b32 v13, 3, v2
v_cmp_eq_u32 s[46:47], 1, v13
v_cmp_eq_u32 s[48:49], 2, v13
v_cmp_eq_u32 s[50:51], 3, v13
v_lshrrev_b32 v12, 2, v2
v_cmp_eq_u32 s[52:53], v12, v3
v_mov_b32 v11, 1.0""")
    for mt in range(2):
        g = AC(5, mt)
        k(f"""v_cndmask_b32 v{8+mt}, v{g}, v{g+1}, s[46:47]
v_cndmask_b32 v{8+mt}, v{8+mt}, v{g+2}, s[48:49]
v_cndmask_b32 v{8+mt}, v{8+mt}, v{g+3}, s[50:51]
v_cndmask_b32 v{8+mt}, 0, v{8+mt}, s[52:53]""")
    for mt in range(2): k(f"v_mfma_f32_16x16x4_f32 {vr(RS+4*mt)}, v{8+mt}, v11, 0")
    for mt in range(2): k(f"v_mfma_f32_16x16x4_f32 {vr(TMP+4*mt)}, v11, v{8+mt}, 0")
    k(f"""s_mov_b32 s32, {fl(1/576)}
s_mov_b32 s33, {fl(LOG2E)}
v_mov_b32 v12, {fl(1e-5)}
v_cmp_lt_u32 s[46:47], 7, v2
v_cmp_gt_u32 s[48:49], 4, v2
v_cmp_eq_u32 s[52:53], 2, v3
v_cmp_eq_u32 s[54:55], 3, v3""")
    for e in range(8): k(f"v_fma_f32 v{RS+e}, v{RS+e}, s32, v12\nv_rsq_f32 v{RS+e}, v{RS+e}")
    for e in range(8): k(f"v_mul_f32 v{RS2+e}, s33, v{RS+e}")
    for mt in range(2):
        k(f"v_fma_f32 v{RL2+2*mt}, v{TMP+4*mt}, s32, v12\nv_rsq_f32 v{RL2+2*mt}, v{RL2+2*mt}\nv_mul_f32 v{RL2+2*mt}, s33, v{RL2+2*mt}")
    for t in (2, 0, 4, 3, 1):
        for q in range(4):
            a = AC(t, 0) + 2*q
            if t < 2: phi2(k, a, a, RS2+2*q, TMP + 2*(q % 2))
            elif t < 4: k(f"v_pk_mul_f32 {vr(a,2)}, {vr(a,2)}, {vr(RS+2*q,2)}")
            else:
                phi2(k, TMP+4, a, RS2+2*q, TMP + 2*(q % 2))
                k(f"v_pk_mul_f32 {vr(a,2)}, {vr(a,2)}, {vr(RS+2*q,2)}")
                for h in range(2):
                    k(f"v_cndmask_b32 v{a+h}, v{a+h}, v{TMP+4+h}, s[46:47]\nv_cndmask_b32 v{a+h}, v{a+h}, 1.0, s[50:51]")
            k(f"v_cvt_pk_bf16_f32 v{PKD+4*t+q}, v{a}, v{a+1}")
    stamp(k, 6)
    P = lambda t: vr(PKD+4*t)
    T00, T11, T0L, T1L, TL0, TL1, TLL = [160 + 4*i for i in range(7)]
    for d, a, b in ((T00,0,2), (T0L,0,4), (TL0,4,2), (TLL,4,4), (TL1,4,3), (T1L,1,4), (T11,1,3)):
        k(f"{MF} {vr(d)}, {P(a)}, {P(b)}, 0")
    k(f"""s_lshl_b32 s3, s20, 12
s_add_u32 s3, s3, {RED}
v_add_u32 v7, s3, v4
s_lshl_b32 s3, s20, 10
v_add_u32 v14, s3, v4
v_lshrrev_b32 v15, 3, v1
v_and_b32 v13, 7, v1
v_lshl_add_u32 v15, v15, 4, v13
v_lshlrev_b32 v15, 4, v15
v_add_u32 v15, 0x800, v15
v_add_u32 v13, 0xc00, v4
v_cmp_gt_u32 vcc, 32, v1
v_cndmask_b32 v15, v13, v15, vcc
s_cmp_eq_u32 s20, 2
s_cselect_b64 vcc, -1, 0
v_cndmask_b32 v14, v14, v15, vcc
v_add_u32 v14, {RED}, v14
ds_write_b128 v7, {vr(T00)}
v_cndmask_b32 v{TL0}, v{TL1}, v{TL0}, s[52:53]
v_cndmask_b32 v{TL0+1}, v{TL1+1}, v{TL0+1}, s[52:53]
v_mov_b32 v{TL0+2}, v{TLL}
v_mov_b32 v{TL0+3}, v{TLL+1}
ds_write_b128 v7, {vr(TL0)} offset:3072""")
    for r in range(4): k(f"v_cndmask_b32 v{T0L+r}, v{T1L+r}, v{T0L+r}, s[48:49]")
    k(f"""ds_write_b128 v7, {vr(T0L)} offset:2048
ds_write_b128 v7, {vr(T11)} offset:1024
s_mul_i32 s29, s23, 3
s_add_u32 s29, s29, s20
s_lshl_b32 s29, s29, 14
s_add_u32 s29, s29, s42
s_lshl_b32 s3, s22, 10
s_add_u32 s30, s29, s3
s_waitcnt vmcnt(0) lgkmcnt(0)
s_barrier
s_cmp_eq_u32 s20, 3
s_cbranch_scc1 L_p3_nopub""")
    k.optional(True)
    for c in range(4): k(f"ds_read_b128 {vr(184+4*c)}, v14 offset:{4096*c}")
    for r in range(0, 4, 2):
        k(f"v_pk_add_f32 {vr(184+r,2)}, {vr(184+r,2)}, {vr(188+r,2)}\nv_pk_add_f32 {vr(192+r,2)}, {vr(192+r,2)}, {vr(196+r,2)}\nv_pk_add_f32 {vr(184+r,2)}, {vr(184+r,2)}, {vr(192+r,2)}")
    for r in range(4): k(f"v_min_u32 v{184+r}, -2, v{184+r}")
    k(f"buffer_store_dwordx4 v[184:187], v4, s[8:11], s30 offen sc1")
    k.optional(False)
    k("L_p3_nopub:")
    stamp(k, 7)
    k(f"""s_cmp_eq_u32 s45, 0
s_cbranch_scc1 L_p3_nog_dma
s_mov_b32 s34, 0
s_mov_b32 s35, s23
L_p3_gd_tile:
s_mov_b32 s36, s20
L_p3_gd_k:
s_mul_i32 s3, s35, 18
s_add_u32 s3, s3, s36
s_lshl_b32 s3, s3, 10
s_add_u32 s3, s3, {hex(GT)}
s_mul_i32 s37, s36, 5
s_add_u32 s37, s37, s34
s_lshl_b32 m0, s37, 10""")
    k.optional(True)
    k("buffer_load_dwordx4 v4, s[8:11], s3 offen lds")
    k.optional(False)
    k(f"""s_add_u32 s36, s36, 4
s_cmp_lt_u32 s36, 18
s_cbranch_scc1 L_p3_gd_k
s_add_u32 s34, s34, 1
s_add_u32 s35, s35, 16
s_cmp_lt_u32 s35, 36
s_cbranch_scc1 L_p3_gd_tile
L_p3_nog_dma:""")
    k("""v_and_b32 v14, 1, v2
v_lshlrev_b32 v14, 2, v14
v_bfe_u32 v15, v2, 2, 1
v_lshl_add_u32 v14, v15, 3, v14
v_add_u32 v14, 2, v14
v_lshl_add_u32 v14, v3, 4, v14
v_lshlrev_b32 v14, 4, v14
v_add_u32 v15, 0x10000, v14""")
    QW = lambda kp, t: ar(12*(kp % 3) + 4*t)
    qrd = lambda kp: [lds_rd(QW(kp, 0), 90 + 2*kp), lds_rd(QW(kp, 1), 91 + 2*kp), lds_rd(QW(kp, 2), 5*kp + 4, ('v14', 'v15'))]
    emit(k, qrd(0)); emit(k, qrd(1))
    for kp in range(18):
        m = [f"{MF} {vr(AC(t,mt))}, {QW(kp,t)}, {vr(A(mt,kp))}, {'0' if kp == 0 else vr(AC(t,mt))}" for t in range(3) for mt in range(2)]
        emit(k, merge(m, qrd(kp+2) if kp + 2 < 18 else []))
    stamp(k, 8)
    k(f"""s_cmp_eq_u32 s45, 0
s_cbranch_scc1 L_p3_nog
s_waitcnt vmcnt(0)
s_barrier
s_mov_b32 s35, s23
v_mov_b32 v14, v4
v_mov_b32 v15, v5
L_p3_g_tile:""")
    k.optional(True)
    GW = lambda kp: ar(4*(kp % 6))
    GA = lambda mt: 184 + 4*mt
    for kp in range(5): k(lds_rd(GW(kp), 5*kp, ('v14', 'v15')))
    for kp in range(18):
        for mt in range(2):
            k(f"{MF} {vr(GA(mt))}, {GW(kp)}, {vr(A(mt,kp))}, {'0' if kp == 0 else vr(GA(mt))}")
            if mt == 0 and kp + 5 < 18: k(lds_rd(GW(kp+5), 5*(kp+5), ('v14', 'v15')))
    k(f"""s_lshr_b32 s36, s35, 1
s_lshl_b32 s36, s36, 3
s_and_b32 s3, s35, 1
s_add_u32 s36, s36, s3
s_mul_i32 s36, s36, {JP_ST}
s_add_u32 s36, s36, s31
s_add_u32 s36, s36, {hex(X3T)}
v_add_u32 v14, 0x400, v14
v_add_u32 v15, 0x400, v15""")
    for q in range(4): k(f"v_cvt_pk_bf16_f32 v{192+q}, v{184+2*q}, v{185+2*q}")
    k(f"""buffer_store_dwordx4 v[192:195], v6, s[8:11], s36 offen
s_add_u32 s35, s35, 16
s_cmp_lt_u32 s35, 36
s_cbranch_scc1 L_p3_g_tile""")
    k.optional(False)
    k("L_p3_nog:")
    stamp(k, 9)
    def gather_loads():
        for c in range(16):
            k(f"buffer_load_dwordx4 {vr(16+4*c)}, v4, s[8:11], s{(29,35,36,37)[c//4]} offen offset:{1024*(c%4)} sc1")
    k(f"""s_min_u32 s3, s20, 2
s_sub_u32 s3, s20, s3
s_lshl_b32 s3, s3, 14
s_sub_u32 s29, s29, s3
s_mov_b32 s34, 0
s_add_u32 s35, s29, 4096
s_add_u32 s36, s29, 8192
s_add_u32 s37, s29, 12288""")
    BQ = lambda mt: 236 + 6*mt
    qe = Rec()
    for mt in range(2):
        for t in range(3):
            for q in range(2 if t < 2 else 1):
                a = AC(t, mt) + 2*q
                phi2(qe, a, a, RL2+2*mt, TMP + 2*(q % 2), bcast=True)
                qe(f"v_cvt_pk_bf16_f32 v{BQ(mt) + (0, 4, 2)[t] + q}, v{a}, v{a+1}")
        qe(f"v_mov_b32 v{BQ(mt)+3}, 0")
    gl = Rec()
    for c in range(16): gl(f"buffer_load_dwordx4 {vr(16+4*c)}, v4, s[8:11], s{(29,35,36,37)[c//4]} offen offset:{1024*(c%4)} sc1")
    emit(k, merge(gl.l, qe.l))
    stamp(k, 10)
    k("s_branch L_p3_check\nL_p3_poll:")
    emit(k, gl.l)
    k("L_p3_check:\nv_max_u32 v13, v16, v17")
    for r in range(2, 64, 2): k(f"v_max3_u32 v13, v{16+r}, v{17+r}, v13")
    k(f"""v_cmp_eq_u32 vcc, -1, v13
s_add_u32 s34, s34, 1
s_cmp_gt_u32 s34, 0x40000
s_cbranch_scc1 L_p3_polled
s_cbranch_vccnz L_p3_poll
L_p3_polled:""")
    for step in (8, 4, 2, 1):
        for c in range(step):
            for r in range(0, 4, 2): k(f"v_pk_add_f32 {vr(16+4*c+r,2)}, {vr(16+4*c+r,2)}, {vr(16+4*(c+step)+r,2)}")
    AL0, AL1, BE0, BE1 = 24, 28, 32, 36
    k(f"""v_cvt_pk_bf16_f32 v16, v16, v17
v_cvt_pk_bf16_f32 v17, v18, v19
s_lshl_b32 s3, s20, 9
s_add_u32 s3, s3, {FIN}
v_lshl_add_u32 v13, v1, 3, s3
ds_write_b64 v13, v[16:17]""")
    stamp(k, 11)
    k(f"""v_lshlrev_b32 v13, 3, v1
v_add_u32 v13, {FIN}, v13
v_and_b32 v14, 3, v2
v_lshl_add_u32 v14, v3, 3, v14
v_lshlrev_b32 v14, 3, v14
v_add_u32 v14, {FIN}, v14
v_mov_b32 v{AL0+3}, 0
v_mov_b32 v{AL1+1}, 0
v_mov_b32 v{BE0+3}, 0
v_mov_b32 v{BE1+1}, 0
s_lshl_b32 s3, s23, 10
s_add_u32 s36, s25, s41
s_add_u32 s34, s36, s3
s_lshr_b32 s3, s23, 3
s_add_u32 s3, s3, 16
s_lshl_b32 s3, s3, 10
s_add_u32 s36, s36, s3
s_bfe_u32 s3, s23, 0x20001
s_lshl_b32 s3, s3, 8
s_add_u32 s36, s36, s3
s_and_b32 s3, s23, 1
s_lshl3_add_u32 s36, s3, s36
s_add_u32 s35, s34, {TAU_ST}
s_add_u32 s37, s36, {TAU_ST}
v_lshlrev_b32 v15, 4, v2
v_lshl_add_u32 v15, v3, 2, v15
v_cmp_eq_u32 s[46:47], 0, v3
v_mov_b32 v12, {fl(1e-6)}
s_waitcnt lgkmcnt(0)
s_barrier
ds_read_b64 v[20:21], v13 offset:1024
ds_read_b64 v[{BE0}:{BE0+1}], v14 offset:1024
ds_read_b64 v[{BE1+2}:{BE1+3}], v14 offset:1056
ds_read_b64 v[{AL0}:{AL0+1}], v13
ds_read_b64 v[{AL1+2}:{AL1+3}], v13 offset:512
v_cndmask_b32 v{BE0+2}, 0, v21, s[52:53]
v_cndmask_b32 v{BE1}, 0, v21, s[54:55]
v_cndmask_b32 v{AL0+2}, 0, v20, s[52:53]
v_cndmask_b32 v{AL1}, 0, v20, s[54:55]""")
    stamp(k, 12)
    D = lambda mt, x: 40 + 16*mt + 4*x
    for mt in range(2):
        b0, b1 = vr(BQ(mt)), vr(BQ(mt)+2)
        k(f"{MF} {vr(D(mt,2))}, {vr(BE0)}, {b0}, 0\n{MF} {vr(D(mt,3))}, {vr(BE1)}, {b1}, 0")
    for mt in range(2):
        b0, b1 = vr(BQ(mt)), vr(BQ(mt)+2)
        k(f"{MF} {vr(D(mt,0))}, {vr(AL0)}, {b0}, 0\n{MF} {vr(D(mt,1))}, {vr(AL1)}, {b1}, 0")
    for mt in range(2):
        for h in range(2):
            rd = D(mt, 2+h) + 3
            k(f"v_add_f32 v{rd}, v{rd}, v12\nv_rcp_f32 v{rd}, v{rd}")
    for mt in range(2):
        O = 72 + 8*mt
        for h in range(2):
            rd = D(mt, 2+h) + 3
            for r in range(4): k(f"v_mul_f32 v{D(mt,h)+r}, v{D(mt,h)+r}, v{rd}")
            k(f"v_cvt_pk_bf16_f32 v{O+2*h}, v{D(mt,h)}, v{D(mt,h)+1}\nv_cvt_pk_bf16_f32 v{O+2*h+1}, v{D(mt,h)+2}, v{D(mt,h)+3}")
        k(f"buffer_store_dwordx4 {vr(O)}, v4, s[8:11], s{34+mt} offen {ST}")
    for mt in range(2):
        O = 72 + 8*mt
        for h in range(2):
            rd = D(mt, 2+h) + 3
            for r in range(2): k(f"v_mul_f32 v{D(mt,2+h)+r}, v{D(mt,2+h)+r}, v{rd}")
            k(f"v_cvt_pk_bf16_f32 v{O+4+h}, v{D(mt,2+h)}, v{D(mt,2+h)+1}")
        k(f"v_cndmask_b32 v{O+4}, v{O+5}, v{O+4}, s[46:47]")
    k("s_mov_b32 exec_hi, 0")
    for mt in range(2): k(f"buffer_store_dword v{72+8*mt+4}, v15, s[8:11], s{36+mt} offen")
    endpgm(k)

P4D = int(os.environ.get('P4D', 8)); P4B = int(os.environ.get('P4B', 2))
def role_P4(k):
    k("""s_load_dwordx2 s[4:5], s[0:1], 64
s_load_dwordx2 s[6:7], s[0:1], 48""")
    lane_setup(k); rbcb(k)
    k(f"""s_mul_i32 s28, s25, {TAU_ST}
s_add_u32 s28, s28, s40
s_mul_i32 s29, s24, {90*1024}
s_add_u32 s29, s29, s42
s_lshl_b32 s43, s20, 10
s_add_u32 s29, s29, s43
s_mov_b32 m0, s43
v_add_u32 v5, 0x10000, v4
v_mul_u32_u24 v6, {2*JP_ST}, v3
v_lshl_add_u32 v6, v2, 4, v6
s_lshr_b32 s30, s25, 1
s_lshl_b32 s30, s30, 8
s_and_b32 s3, s25, 1
s_lshl3_add_u32 s30, s3, s30
s_add_u32 s30, s30, s41
s_mul_i32 s31, s24, {16*JP_ST}
s_add_u32 s31, s31, s30
s_lshr_b32 s3, s27, 1
s_lshl_b32 s3, s3, 3
s_and_b32 s32, s27, 1
s_add_u32 s3, s3, s32
s_mul_i32 s3, s3, {JP_ST}
s_add_u32 s30, s30, s3
s_waitcnt lgkmcnt(0)""")
    srd(k, 8, 4, 5, WS_END)
    RES = 108
    st = {'m': 0}
    def loads(kp):
        out = []
        if kp < 18:
            out.append(f"buffer_load_dwordx4 {vr(XB+4*kp)}, v4, s[8:11], s28 offen offset:{(kp % 4)*1024}" + ("\ns_add_u32 s28, s28, 4096" if kp % 4 == 3 else ""))
            lim = (5*(kp+1) + 3)//4
            while st['m'] < lim:
                out.append(f"buffer_load_dwordx4 v4, s[8:11], s29 offen lds @tag=e{st['m']}\ns_add_u32 s29, s29, 4096\ns_add_u32 m0, m0, 4096"); st['m'] += 1
        elif kp - 18 < 5:
            slot = kp - 18
            if slot < 4: out.append(f"s_add_u32 s3, s31, {(8*(slot//2) + slot % 2)*JP_ST}\nbuffer_load_dwordx2 {vr(RES+2*slot,2)}, v6, s[8:11], s3 offen")
            else: out.append(f"buffer_load_dwordx2 {vr(RES+8,2)}, v6, s[8:11], s30 offen")
        return out
    def lds_rd(dst, f):
        o = f*1024
        return f"ds_read_b128 {dst}, v4 offset:{o}" if o < 65536 else f"ds_read_b128 {dst}, v5 offset:{o-65536}"
    WB = lambda kp, t: ar(20*(kp % 2) + 4*t)
    for kp in range(P4D): emit(k, loads(kp))
    stamp(k, 1)
    def dneed(kl): return (5*(min(kl, 17)+1) + 3)//4 - 1
    k(f"WAITVM e{dneed(0)}\ns_barrier")
    for t in range(5): k(lds_rd(WB(0, t), t))
    covered = 0
    for kp in range(18):
        if kp + 1 < 18 and kp + 1 > covered:
            covered = min(17, kp + P4B)
            k(f"WAITVM e{dneed(covered)}\ns_barrier")
        if kp in (0, 8, 16): stamp(k, 2 + kp//8)
        m = [f"{MF} {vr(ACC+4*t)}, {WB(kp,t)}, {vr(XB+4*kp)}, {'0' if kp == 0 else vr(ACC+4*t)}" for t in range(5)]
        side = [lds_rd(WB(kp+1, t), 5*(kp+1) + t) for t in range(5)] if kp + 1 < 18 else []
        ld = loads(kp + P4D)
        side = merge(side, ld) if side else ld
        emit(k, merge(m, side))
    for kp in range(18 + P4D, 23): emit(k, loads(kp))
    stamp(k, 5)
    k(f"""v_mov_b32 v8, 0
s_cmp_eq_u32 s24, 0
s_cselect_b32 s3, 0, 1.0
v_mov_b32 v9, s3
v_cmp_eq_u32 vcc, 0, v3
v_cndmask_b32 v9, 1.0, v9, vcc""")
    PKR = lambda s_: RES + 2*s_
    for slot in range(5):
        a = ACC + 4*slot; E = 120
        for q in range(2):
            k(f"v_lshlrev_b32 v{E+2*q}, 16, v{RES+2*slot+q}\nv_and_b32 v{E+2*q+1}, 0xffff0000, v{RES+2*slot+q}")
        for r in range(0, 4, 2): k(f"v_pk_add_f32 {vr(a+r,2)}, {vr(a+r,2)}, {vr(E+r,2)}")
        k(f"v_cvt_pk_bf16_f32 v{PKR(slot)}, v{a}, v{a+1}\nv_cvt_pk_bf16_f32 v{PKR(slot)+1}, v{a+2}, v{a+3}")
    k("s_cmp_lg_u32 s45, 0\ns_cbranch_scc1 L_p4_final")
    y2_exchange_store(k, 'p4', 44, 92*1024, ST, PKR)
    k(f"v_mul_f32 v{ACC+1}, v{ACC+1}, v9")
    for r in range(16): k(f"v_fmac_f32 v8, v{ACC+r}, v{ACC+r}")
    k("s_cmp_eq_u32 s21, 0\ns_cbranch_scc1 L_p4_ss4")
    for r in range(16, 20): k(f"v_fmac_f32 v8, v{ACC+r}, v{ACC+r}")
    k("L_p4_ss4:\nv_mov_b32 v11, 1.0")
    ss_addr(k, 38, SS2)
    k(f"""v_mfma_f32_16x16x4_f32 v[120:123], v11, v8, 0
v_lshlrev_b32 v13, 4, v2
s_mov_b64 exec, 0xffff
buffer_atomic_add_f32 v120, v13, s[8:11], s38 offen""")
    endpgm(k)
    k("L_p4_final:")
    srd(k, 12, 6, 7, XH_SZ)
    tau_to_ts(k, 25, 26)
    k(f"""s_mul_i32 s26, s26, 18432
v_mul_u32_u24 v7, 1152, v2
v_lshl_add_u32 v7, v3, 4, v7
s_lshl_b32 s3, s24, 7
s_add_u32 s39, s26, s3
buffer_store_dwordx4 {vr(RES)}, v7, s[12:15], s39 offen
buffer_store_dwordx4 {vr(RES+4)}, v7, s[12:15], s39 offen offset:64
s_cmp_eq_u32 s21, 0
s_cbranch_scc1 L_p4_end
s_lshr_b32 s3, s27, 1
s_lshl_b32 s3, s3, 6
s_add_u32 s26, s26, s3
s_and_b32 s3, s27, 1
s_lshl3_add_u32 s26, s3, s26
buffer_store_dwordx2 {vr(RES+8,2)}, v7, s[12:15], s26 offen
L_p4_end:""")
    endpgm(k)

def simple_kernel(name, kid, n, params, body=None, label=None, shares=None):
    k = Kern(name, shares=shares)
    prof_init(k, kid)
    k(f"s_cmp_ge_u32 s2, {n}\ns_cbranch_scc1 L_{name}_exit")
    for r, v in params: k(f"s_mov_b32 s{r}, {hex(v)}")
    if body: k(f"{label}:"); body(k)
    else: k(f"s_branch {label}")
    k(f"L_{name}_exit:\ns_endpgm")
    return k
```

```python
import numpy as np
S, D, H, DH = 2048, 576, 32, 18
XH_SZ = 0x240000
import os
TAU_ST = int(os.environ.get('TAU_ST', 18432+256)); JP_ST = int(os.environ.get('JP_ST', 16384+256))
BUF = 0x250000
XH0, XH1, XH2, XH3, X3T, O1, O2, WT = [i*BUF for i in range(8)]
WQ = 0x1280000; WOH = 0x1480000; WOT = 0x1540000; GT = 0x1600000; FT = 0x16C0000
SS0 = 0x1720000; SS2 = 0x1722000; KVP1 = 0x1780000; KVP2 = 0x1840000
WS_END = 0x2000000
WQ_HP = 126*1024

def bf(x):
    x = np.ascontiguousarray(x, dtype=np.float32)
    u = x.view(np.uint32)
    r = ((u + 0x7FFF + ((u >> 16) & 1)) & 0xFFFF0000).astype(np.uint32)
    return r.view(np.float32)
def u16f(u):
    return (np.asarray(u).view(np.uint16).astype(np.uint32) << 16).view(np.float32)
def Fmat():
    d = np.arange(D)[:, None]; j = np.arange(288)[None, :]
    F = np.zeros((D, D))
    F[:, 0::2] = np.sqrt(2/D)*np.cos(2*np.pi*d*j/D); F[:, 1::2] = -np.sqrt(2/D)*np.sin(2*np.pi*d*j/D)
    F[:, 0] = (-1.0)**np.arange(D)/24; F[:, 1] = 1/24
    return F
def ts_of(t):
    return (t & 64) | ((t >> 4 & 1) << 5) | ((t >> 1 & 3) << 3) | ((t >> 3 & 1) << 2) | ((t & 1) << 1) | (t >> 5 & 1)
TS = ts_of(np.arange(128))
def untau(a):
    out = np.empty_like(a); out[TS] = a
    return out.reshape((2048,) + a.shape[2:])
def unfrag(buf16):
    a = np.asarray(buf16)[:128*TAU_ST//2].reshape(128, TAU_ST//2)[:, :9216].reshape(128, 18, 4, 16, 8)
    return untau(a.transpose(0, 3, 1, 2, 4).reshape(128, 16, 576))
def uny2(buf16):
    a = np.asarray(buf16)[:144*JP_ST//2].reshape(144, JP_ST//2)[:, :8192].reshape(144, 64, 16, 2, 4)
    return untau(a.transpose(1, 3, 2, 0, 4).reshape(128, 16, 576))
def tile_cols(T):
    i = np.arange(16)
    return 32*(T//2) + 8*(i//4) + 4*(T % 2) + i % 4
def eslot():
    E = np.zeros((18, 4, 8), dtype=int)
    for k in range(18):
        for g in range(4):
            for u in range(8):
                if k < 16: E[k, g, u] = 18*(2*k + u//4) + 4*g + u % 4
                else:
                    hp = 8*(k-16) + 2*g + u//4; r = u % 4
                    E[k, g, u] = 18*(2*hp + r//2) + 16 + r % 2
    return E
def wq_cols(hp):
    C = -np.ones((7, 16), dtype=int)
    for hl in range(2):
        h = 2*hp + hl
        C[hl] = 576 + 18*h + np.arange(16); C[2+hl] = 1152 + 18*h + np.arange(16); C[5+hl] = 18*h + np.arange(16)
        for x in range(2):
            C[4, 4*hl + x] = 1152 + 18*h + 16 + x
            C[4, 8 + 4*hl + x] = 576 + 18*h + 16 + x
            C[4, 2 + 4*(2*hl + x)] = 18*h + 16 + x
    return C
```

```python
from gen2 import *
if __name__ == "__main__":
    k1, k2 = kernel1(), kernel2()
    k3 = simple_kernel("k3_kernel", 3, 256, [(40, XH1), (41, O1), (42, KVP1), (45, 0)], role_P3, "L_p3_body")
    k4 = simple_kernel("k4_kernel", 4, 256, [(40, O1), (41, XH1), (42, WOH), (44, XH2), (45, 0)], role_P4, "L_p4_body")
    k5 = simple_kernel("k5_kernel", 5, 144, [(40, XH2), (41, XH3), (42, SS2)], None, "L_p2_body", k2)
    k6 = simple_kernel("k6_kernel", 6, 256, [(40, XH3), (41, O2), (42, KVP2), (45, 1)], None, "L_p3_body", k3)
    k7 = simple_kernel("k7_kernel", 7, 256, [(40, O2), (41, X3T), (42, WOT), (44, 0), (45, 1)], None, "L_p4_body", k4)
    k7("L_code_end:")
    write_module(sys.argv[1], [("k1_kernel", 256, 512, 157*1024), ("k2_kernel", 256, 256, 117*1024), ("k3_kernel", 256, 256, 146*1024),
        ("k4_kernel", 256, 256, 96*1024), ("k5_kernel", 144, 256, 62*1024), ("k6_kernel", 256, 256, 146*1024), ("k7_kernel", 256, 256, 96*1024)],
        [k1, k2, k3, k4, k5, k6, k7])
```

```python
import struct, sys, os
from asmlib import *
from layout import *

def f2u(x): return struct.unpack('<I', struct.pack('<f', x))[0]
def fl(x): return '0x%08x' % f2u(x)
def vr(b, n=4): return f'v[{b}:{b+n-1}]'
def ar(b, n=4): return f'a[{b}:{b+n-1}]'
MF = 'v_mfma_f32_16x16x32_bf16'
SC = (2/576)**0.5
LOG2E = 1.4426950408889634; LN2 = 0.6931471805599453

PROF = bool(os.environ.get("PROF"))
PROFB = 0x1A00000
PG = os.environ.get('PG', 'A')
def stamp(k, n, grp='A'):
    if PROF and (grp == PG or n in (0, 14)): k(f"s_memtime s[{64+2*n}:{65+2*n}]")
def count(k, n, sreg):
    if PROF and PG == 'C': k(f"s_waitcnt lgkmcnt(0)\ns_add_u32 s{64+2*n}, s64, s{sreg}")
def prof_init(k, kid):
    if PROF:
        k(f"s_mov_b32 s96, {kid}")
        for n in range(16): k(f"s_mov_b32 s{64+2*n}, 0")
        k("s_memrealtime s[94:95]")
        stamp(k, 0)
def prof_dump(k):
    if PROF:
        k("s_waitcnt vmcnt(0)")
        stamp(k, 14)
        k("s_memrealtime s[90:91]")
        k("s_waitcnt lgkmcnt(0)\ns_mov_b64 exec, -1\nv_mov_b32 v8, 0")
        for n in range(16): k(f"v_writelane_b32 v8, s{64+2*n}, {n}")
        k(f"""s_lshl_b32 s3, s96, 10
s_add_u32 s3, s3, s2
s_lshl_b32 s3, s3, 3
v_lshrrev_b32 v9, 6, v0
v_readfirstlane_b32 s97, v9
s_add_u32 s3, s3, s97
s_lshl_b32 s3, s3, 6
s_add_u32 s3, s3, {hex(PROFB)}
v_lshlrev_b32 v9, 2, v1
s_mov_b64 exec, 0xffff
buffer_store_dword v8, v9, s[8:11], s3 offen
s_mov_b64 exec, -1""")
def endpgm(k):
    prof_dump(k)
    k("s_endpgm")
def emit(k, lines):
    for l in lines: k(l)

def srd(k, d, lo, hi, nbytes):
    k(f"s_mov_b32 s{d}, s{lo}\ns_mov_b32 s{d+1}, s{hi}\ns_mov_b32 s{d+2}, {hex(nbytes)}\ns_mov_b32 s{d+3}, 0x20000")
def lane_setup(k):
    k("""v_lshrrev_b32 v1, 6, v0
v_readfirstlane_b32 s20, v1
v_and_b32 v1, 63, v0
v_and_b32 v2, 15, v0
v_bfe_u32 v3, v0, 4, 2
v_lshlrev_b32 v4, 4, v1""")
def cb_setup(k, scb):
    k(f"""s_and_b32 s21, s{scb}, 1
s_xor_b32 s21, s21, 1
s_lshl_b32 s22, s{scb}, 2
s_lshr_b32 s27, s{scb}, 1
s_add_u32 s27, s27, 32""")
def rbcb(k):
    k("""s_and_b32 s23, s2, 7
s_lshl_b32 s23, s23, 2
s_lshr_b32 s3, s2, 3
s_and_b32 s24, s3, 3
s_add_u32 s23, s23, s24
s_lshr_b32 s24, s3, 2
s_lshl2_add_u32 s25, s23, s20""")
    cb_setup(k, 24)
def tau_to_ts(k, src, dst):
    k(f"""s_and_b32 s{dst}, s{src}, 64
s_bfe_u32 s3, s{src}, 0x10004
s_lshl_b32 s3, s3, 5
s_or_b32 s{dst}, s{dst}, s3
s_bfe_u32 s3, s{src}, 0x20001
s_lshl_b32 s3, s3, 3
s_or_b32 s{dst}, s{dst}, s3
s_bfe_u32 s3, s{src}, 0x10003
s_lshl_b32 s3, s3, 2
s_or_b32 s{dst}, s{dst}, s3
s_and_b32 s3, s{src}, 1
s_lshl_b32 s3, s3, 1
s_or_b32 s{dst}, s{dst}, s3
s_bfe_u32 s3, s{src}, 0x10005
s_or_b32 s{dst}, s{dst}, s3""")
def tile_of(slot): return slot

XB = 16
ACC = 88
XO = 45*1024
UP = 117*1024

def rows_dma_setup(k, vrow0, vrow1):
    k(f"""v_and_b32 v8, 7, v1
v_xor_b32 v9, v8, v3
v_lshl_add_u32 v{vrow0}, v9, 4, v{vrow0}
v_xor_b32 v9, 4, v9
v_lshl_add_u32 v{vrow1}, v9, 4, v{vrow1}""")
def rows_read_addr(k, va0, va1, XO=XO):
    k(f"""v_lshrrev_b32 v8, 1, v2
v_xor_b32 v8, v8, v3
v_lshlrev_b32 v9, 7, v2            ; (i>>3)*1024 + (i&7)*128
s_mul_i32 s3, s20, 18432
s_add_u32 s3, s3, {XO}
v_add_u32 v9, s3, v9
v_lshl_add_u32 v{va0}, v8, 4, v9
v_xor_b32 v8, 4, v8
v_lshl_add_u32 v{va1}, v8, 4, v9""")
def rows_read(k, va0, va1):
    order = [x for kk in range(9) for x in (kk, kk+9)]
    for kk in order:
        k(f"ds_read_b128 {vr(XB+4*kk)}, v{(va0, va1)[kk % 2]} offset:{(kk//2)*2048}")

def sym_gemm(swap, extra=(), xrd=None, va='v4'):
    out = []
    W = lambda kk, s: ar(20*(kk % 2) + 4*s)
    def rd(kk):
        r = Rec()
        if xrd: xrd(r, kk); xrd(r, kk+9)
        for s in range(5): r(f"ds_read_b128 {W(kk,s)}, {va} offset:{(kk*5+s)*1024}")
        return r.l
    out += rd(0)
    extra = list(extra); ne = len(extra)
    for kk in range(9):
        m = []
        for s in range(5):
            for h in range(2):
                acc = vr(ACC + 8*s + 4*h); x = vr(XB + 4*(kk + 9*h)); c = '0' if kk == 0 else acc
                m.append(f"{MF} {acc}, {x}, {W(kk,s)}, {c}" if swap else f"{MF} {acc}, {W(kk,s)}, {x}, {c}")
        side = rd(kk+1) if kk + 1 < 9 else []
        side += extra[kk*ne//9:(kk+1)*ne//9]
        out += merge(m, side)
    return out

def opt_slot(k, tag, slot, body):
    if slot == 4:
        k(f"s_cmp_eq_u32 s21, 0\ns_cbranch_scc1 L_{tag}_no5"); k.optional(True)
    body()
    if slot == 4:
        k.optional(False); k(f"L_{tag}_no5:")

CODE_PREFETCH = int(os.environ.get('CPF', 1))
TLBW = int(os.environ.get('TLBW', 0))
PF2 = int(os.environ.get('PF2', 0))
ST = os.environ.get("ST", "")
def trig_setup(k):
    k(f"""s_lshr_b32 s3, s38, 1
s_lshl_b32 s3, s3, 5
s_and_b32 s39, s38, 1
s_lshl2_add_u32 s3, s39, s3
v_add_u32 v10, s3, v8              ; c
v_lshrrev_b32 v11, 1, v10
v_and_b32 v12, 1, v10
v_cvt_f32_u32 v12, v12
v_mul_f32 v12, {fl(0.25)}, v12
v_cvt_f32_u32 v11, v11
v_mul_f32 v11, {fl(1/576)}, v11
v_cmp_eq_u32 vcc, 0, v10
v_cndmask_b32 v11, v11, 0.5, vcc
v_cmp_eq_u32 vcc, 1, v10
v_cndmask_b32 v12, v12, 0, vcc
v_cos_f32 v15, v11
v_add_f32 v15, v15, v15""")

def f_image(k, tag, vb, s5):
    T = 88
    k(f"""s_add_u32 s38, s22, s20
v_lshrrev_b32 v8, 2, v2
v_lshlrev_b32 v8, 3, v8
v_and_b32 v9, 3, v2
v_add_u32 v8, v8, v9
v_lshlrev_b32 v9, 3, v3
v_cvt_f32_u32 v9, v9""")
    trig_setup(k)
    k(f"""v_mul_f32 v13, {fl(32.0)}, v11
v_fma_f32 v{T}, v9, v11, v12
v_add_f32 v{T+8}, v{T}, v13
v_add_f32 v{T+1}, v{T}, v11
v_add_f32 v{T+9}, v{T+8}, v11
v_cos_f32 v13, v13
v_cos_f32 v{T}, v{T}
v_cos_f32 v{T+8}, v{T+8}
v_cos_f32 v{T+1}, v{T+1}
v_cos_f32 v{T+9}, v{T+9}
s_lshl_b32 s3, s20, 10
v_add_u32 v14, s3, {vb}
v_add_f32 v13, v13, v13""")
    for u in range(2, 8): k(f"v_fma_f32 v{T+u}, v15, v{T+u-1}, -v{T+u-2}\nv_fma_f32 v{T+8+u}, v15, v{T+8+u-1}, -v{T+8+u-2}")
    for kk in range(9):
        cur = T + 8*(kk % 2); oth = T + 8*((kk+1) % 2); P = T + 16 + 4*(kk % 2)
        if kk >= 2:
            for u in range(8): k(f"v_fma_f32 v{cur+u}, v13, v{oth+u}, -v{cur+u}")
        for q in range(4): k(f"v_cvt_pk_bf16_f32 v{P+q}, v{cur+2*q}, v{cur+2*q+1}")
        k(f"ds_write_b128 v14, {vr(P)} offset:{kk*5120}")
    k(f"s_cmp_eq_u32 s{s5}, 0\ns_cbranch_scc1 L_{tag}_trig_done\ns_mov_b32 s38, s27\ns_mov_b32 s33, s20")
    trig_setup(k)
    k(f"""L_{tag}_tr:
s_lshl_b32 s3, s33, 5
v_cvt_f32_u32 v13, s3
v_add_f32 v13, v13, v9
v_fma_f32 v13, v13, v11, v12
v_fract_f32 v13, v13
v_add_f32 v{T+1}, v13, v11
v_cos_f32 v{T}, v13
v_cos_f32 v{T+1}, v{T+1}
s_mul_i32 s3, s33, 5120
v_add_u32 v14, s3, {vb}""")
    for u in range(2, 8): k(f"v_fma_f32 v{T+u}, v15, v{T+u-1}, -v{T+u-2}")
    for q in range(4): k(f"v_cvt_pk_bf16_f32 v{T+8+q}, v{T+2*q}, v{T+2*q+1}")
    k(f"""s_add_u32 s33, s33, 4
s_cmp_lt_u32 s33, 9
ds_write_b128 v14, {vr(T+8)} offset:4096
s_cbranch_scc1 L_{tag}_tr
L_{tag}_trig_done:""")

def y2_exchange_store(k, tag, sbase, ssbase, LX, st, pk, vss, san=False):
    k(f"""v_mov_b32 v11, 1.0
s_and_b32 s38, s20, 1            ; ub
s_lshl_b32 s3, s20, 10
s_add_u32 s3, s3, {LX}
v_mfma_f32_16x16x4_f32 v[128:131], v11, v{vss}, 0
v_lshl_add_u32 v5, v1, 3, s3
v_xor_b32 v6, 0x400, v5
s_cmp_eq_u32 s38, 0
s_cselect_b64 vcc, -1, 0""")
    for q in range(2):
        for r in range(2):
            k(f"v_cndmask_b32 v{132+2*q+r}, v{pk(q)+r}, v{pk(2+q)+r}, vcc")
            k(f"v_cndmask_b32 v{pk(q)+r}, v{pk(2+q)+r}, v{pk(q)+r}, vcc")
        k(f"ds_write_b64 v5, {vr(132+2*q,2)} offset:{512*q}")
    k(f"""ds_write_b32 v5, v128 offset:4096
ds_write_b64 v5, {vr(pk(4),2)} offset:4608
s_lshr_b32 s3, s25, 1
s_lshl_b32 s3, s3, 8
s_add_u32 s39, s3, s{sbase}        ; + pi*256
v_mul_u32_u24 v7, {2*JP_ST}, v3
v_lshl_add_u32 v7, v2, 4, v7
s_lshr_b32 s3, s27, 1
s_lshl_b32 s3, s3, 3
s_and_b32 s35, s27, 1
s_add_u32 s3, s3, s35
s_mul_i32 s3, s3, {JP_ST}
s_add_u32 s34, s3, s39""")
    k(f"""s_lshl_b32 s3, s24, 1
s_add_u32 s3, s3, s38
s_mul_i32 s3, s3, {8*JP_ST}
s_add_u32 s39, s39, s3
s_add_u32 s35, s39, {JP_ST}
s_lshr_b32 s36, s25, 3
s_lshl_b32 s36, s36, 1
s_lshr_b32 s3, s24, 2
s_add_u32 s36, s36, s3
s_lshl_b32 s36, s36, 10
s_bfe_u32 s3, s25, 0x20001
s_lshl_b32 s3, s3, 8
s_add_u32 s36, s36, s3
s_and_b32 s3, s24, 3
s_lshl2_add_u32 s36, s3, s36
s_add_u32 s36, s36, {hex(ssbase)}
s_waitcnt lgkmcnt(0)
s_barrier
ds_read_b64 v[132:133], v6
ds_read_b64 v[134:135], v6 offset:512
ds_read_b32 v129, v6 offset:4096
ds_read_b64 v[144:145], v6 offset:4608
v_mov_b32 v146, v{pk(4)}
v_mov_b32 v147, v{pk(4)+1}""")
    for q in range(2):
        for r in range(2):
            k(f"v_cndmask_b32 v{136+4*q+r}, v{132+2*q+r}, v{pk(q)+r}, vcc\nv_cndmask_b32 v{138+4*q+r}, v{pk(q)+r}, v{132+2*q+r}, vcc")
        k(f"buffer_store_dwordx4 {vr(136+4*q)}, v7, s[8:11], s{(39,35)[q]} offen {st}")
    k(f"""v_cvt_pk_bf16_f32 v128, v128, v129
{'v_min_u32 v128, -2, v128' if san else ''}
s_and_b64 exec, vcc, 0xffff
s_cbranch_execz L_{tag}_noss""")
    k.optional(True)
    k(f"buffer_store_dword v128, v4, s[8:11], s36 offen {st}")
    k.optional(False)
    k(f"""L_{tag}_noss:
s_mov_b64 exec, -1
s_and_b32 s3, s38, s21
s_cbranch_scc0 L_{tag}_nx5""")
    k.optional(True)
    k(f"buffer_store_dwordx4 v[144:147], v7, s[8:11], s34 offen {st}")
    k.optional(False)
    k(f"L_{tag}_nx5:")

def sumsq(k, tag, val, vdc):
    k(f"v_mul_f32 v8, v{val(0)}, v{val(0)}\nv_mul_f32 v12, v{val(0)+1}, v{vdc}\nv_fmac_f32 v8, v12, v12")
    for s_ in range(4):
        for r in range(4):
            if s_ or r > 1: k(f"v_fmac_f32 v8, v{val(s_)+r}, v{val(s_)+r}")
    k(f"s_cmp_eq_u32 s21, 0\ns_cbranch_scc1 L_{tag}_ss4")
    for r in range(4): k(f"v_fmac_f32 v8, v{val(4)+r}, v{val(4)+r}")
    k(f"L_{tag}_ss4:")

def poison1(k):
    srd(k, 8, 4, 5, PZ1_END)
    k(f"""v_mov_b32 v28, -1
v_mov_b32 v29, -1
v_mov_b32 v30, -1
v_mov_b32 v31, -1
s_lshl2_add_u32 s3, s2, s20
s_mul_i32 s3, s3, 3072
s_add_u32 s3, s3, {hex(XH1)}""")
    for m in range(3): k(f"buffer_store_dwordx4 v[28:31], v4, s[8:11], s3 offen offset:{1024*m} sc1")
LX1 = 157*1024
def kernel1():
    k = Kern("k1_kernel")
    prof_init(k, 1)
    k("""s_cmp_ge_u32 s2, 256
s_cbranch_scc1 L_k1_exit
s_load_dwordx2 s[4:5], s[0:1], 64
s_load_dwordx2 s[6:7], s[0:1], 0
s_load_dwordx4 s[48:51], s[0:1], 8
s_load_dwordx2 s[52:53], s[0:1], 32""")
    if CODE_PREFETCH:
        k("""s_getpc_b64 s[54:55]
L_k1_pc:
s_sub_u32 s54, s54, L_k1_pc-k1_kernel
s_subb_u32 s55, s55, 0
s_bfe_u32 s3, s2, 0x30003
s_lshl_b32 s3, s3, 13
v_lshl_add_u32 v8, v0, 7, s3
v_min_u32 v8, L_code_end-k1_kernel-4, v8
v_mov_b32 v9, s55
v_add_co_u32 v8, vcc, s54, v8
v_addc_co_u32 v9, vcc, 0, v9, vcc
v_cmp_gt_u32 vcc, 64, v0
s_cbranch_vccz L_k1_nopf
global_load_dword v127, v[8:9], off
L_k1_nopf:""")
    lane_setup(k); rbcb(k)
    k(f"""s_and_b32 s3, s2, 7
s_and_b32 s47, s23, 3
s_mul_i32 s46, s3, 3
s_add_u32 s46, s46, s47
s_add_u32 s61, s3, 24
s_cmp_lt_u32 s47, 3
s_cselect_b32 s47, s46, s61
s_sub_u32 s61, s47, 27
s_lshl3_add_u32 s61, s61, s24
s_cmp_lt_u32 s61, 32
s_cselect_b32 s46, 1, 2
s_cmp_lt_u32 s47, 27
s_cselect_b32 s46, 0, s46
s_cselect_b32 s47, s47, s61
s_cmp_lt_u32 s20, 4
s_cbranch_scc1 L_k1_compute""")
    k(f"""s_sub_u32 s20, s20, 4
s_sub_u32 s25, s25, 4
v_lshrrev_b32 v5, 3, v1
v_mul_u32_u24 v5, 1152, v5
v_add_u32 v6, {8*1152}, v5""")
    rows_dma_setup(k, 5, 6)
    tau_to_ts(k, 25, 26)
    k(f"""s_mul_i32 s32, s26, 18432
s_mul_i32 s33, s20, 18432
s_add_u32 s33, s33, {XO}
s_cmp_lg_u32 s46, 0
s_cbranch_scc1 L_k1_lt1
s_lshl_b32 s56, s47, 7
s_lshl2_add_u32 s62, s24, s20
s_mul_i32 s62, s62, {18*3456}
s_add_u32 s62, s62, s56
s_mul_i32 s3, s20, {8*3456}
s_add_u32 s56, s56, s3
s_lshl_b32 s60, s20, 10
s_and_b32 s3, s20, 1
s_lshl_b32 s3, s3, 2
v_lshrrev_b32 v7, 3, v1
v_and_b32 v13, 2, v7
v_or_b32 v13, s3, v13
v_and_b32 v14, 7, v1
v_xor_b32 v13, v13, v14
v_mul_u32_u24 v7, 3456, v7
v_lshl_add_u32 v16, v13, 4, v7
v_min_u32 v15, 17, v1
v_mul_u32_u24 v15, 3456, v15
s_waitcnt lgkmcnt(0)""")
    srd(k, 12, 6, 7, XH_SZ); srd(k, 16, 52, 53, 576*3456)
    def xload(tag, pf):
        k(f"""s_mov_b32 s37, s24
s_mov_b32 s40, 9
L_{tag}_x:
s_lshl_b32 s3, s37, 11
s_add_u32 m0, s3, s33
s_lshl_b32 s3, s37, 7
s_add_u32 s3, s3, s32
buffer_load_dwordx4 v5, s[12:15], s3 offen lds
s_add_u32 m0, m0, 1024
s_add_u32 s37, s37, 1
buffer_load_dwordx4 v6, s[12:15], s3 offen lds
s_cmp_lg_u32 s40, 8
s_cbranch_scc1 L_{tag}_np
{f'buffer_load_dword v125, v15, s[{pf}:{pf+3}], s62 offen' if PF2 else 's_nop 0'}
L_{tag}_np:
s_cmp_eq_u32 s37, 9
s_cselect_b32 s37, 0, s37
s_sub_u32 s40, s40, 1
s_cmp_lg_u32 s40, 0
s_cbranch_scc1 L_{tag}_x""")
    stamp(k, 1)
    xload('k1a', 16)
    stamp(k, 2)
    def j3blocks(n):
        for m in range(n): k(f"buffer_load_dwordx4 v16, s[16:19], s56 offen lds\ns_add_u32 m0, m0, 4096\ns_add_u32 s56, s56, {32*3456}")
    k(f"s_add_u32 m0, s60, {UP}")
    j3blocks(6)
    stamp(k, 3); k("s_waitcnt vmcnt(6)"); stamp(k, 4); k("s_barrier")
    j3blocks(4)
    k(f"s_barrier\ns_add_u32 m0, s60, {XO}")
    j3blocks(8)
    poison1(k); k("s_barrier\ns_waitcnt vmcnt(3)"); stamp(k, 6); k("s_barrier")
    if PROF: srd(k, 8, 4, 5, WS_END)
    endpgm(k)
    k(f"""L_k1_lt1:
s_cmp_eq_u32 s46, 1
s_cselect_b32 s18, {2048*578}, 0
s_mov_b32 s30, s18
s_and_b32 s3, s47, 3
s_lshl_b32 s3, s3, 4
s_and_b32 s56, s47, 28
s_add_u32 s56, s56, s20
s_lshl_b32 s56, s56, 6
s_add_u32 s56, s56, s3
s_mul_i32 s56, s56, 578
s_mov_b32 s62, s56
s_mul_i32 s60, s20, 9216
v_lshlrev_b32 v15, 7, v1
s_mov_b32 s3, {hex((1<<32)//36+1)}""")
    for m in range(9):
        k(f"v_add_u32 v13, {64*m}, v1\nv_mul_hi_u32 v14, v13, s3\nv_lshl_add_u32 v14, v14, 1, 2\nv_lshl_add_u32 v{16+m}, v13, 4, v14")
    k("""s_waitcnt lgkmcnt(0)
s_mov_b32 s16, s48
s_mov_b32 s17, s49
s_mov_b32 s19, 0x20000
s_mov_b32 s28, s50
s_mov_b32 s29, s51
s_mov_b32 s31, 0x20000""")
    srd(k, 12, 6, 7, XH_SZ)
    if PF2: k("buffer_load_dword v124, v15, s[16:19], s62 offen")
    stamp(k, 1)
    xload('k1b', 28)
    stamp(k, 2)
    def t1d(m0, m1, sr):
        for m in range(m0, m1): k(f"buffer_load_dwordx4 v{16+m}, s[{sr}:{sr+3}], s56 offen lds\ns_add_u32 m0, m0, 1024")
    k(f"s_add_u32 m0, s60, {UP}")
    t1d(0, 6, 16)
    stamp(k, 3); k("s_waitcnt vmcnt(6)"); stamp(k, 4); k("s_barrier")
    t1d(6, 9, 16)
    k(f"s_barrier\ns_add_u32 m0, s60, {XO}")
    t1d(0, 9, 28)
    poison1(k); k("s_barrier\ns_waitcnt vmcnt(3)"); stamp(k, 6); k("s_barrier")
    if PROF: srd(k, 8, 4, 5, WS_END)
    endpgm(k)
    k("L_k1_compute:")
    stamp(k, 1)
    f_image(k, "p1", "v4", 21)
    stamp(k, 2)
    rows_read_addr(k, 10, 11)
    k("s_waitcnt vmcnt(0) lgkmcnt(0)")
    srd(k, 8, 4, 5, WS_END)
    k(f"""v_mov_b32 v88, 0
v_lshlrev_b32 v89, 2, v0
s_and_b32 s3, s2, 3
s_lshl_b32 s3, s3, 10
s_add_u32 s3, s3, {hex(CNT)}
s_cmp_ge_u32 s2, 4
s_cbranch_scc1 L_k1_nocnt
buffer_store_dword v88, v89, s[8:11], s3 offen
L_k1_nocnt:""")
    k("s_barrier")
    stamp(k, 4)
    rows_read(k, 10, 11)
    k(f"""s_cmp_eq_u32 s24, 0
s_mov_b32 s36, {fl(SC)}
s_cselect_b32 s3, {fl(1/24)}, s36
s_cselect_b32 s37, 0, s36
v_mov_b32 v8, s36
v_mov_b32 v9, s3
v_mov_b32 v10, s37
v_cmp_eq_u32 vcc, 0, v3
v_cndmask_b32 v9, v8, v9, vcc
v_cndmask_b32 v10, v8, v10, vcc
s_mov_b32 s37, {hex(XH0)}
s_waitcnt lgkmcnt(0)
s_barrier""")
    stamp(k, 5)
    emit(k, sym_gemm(False))
    stamp(k, 6)
    def fin(slot, sc01, dst):
        a = ACC + 8*slot
        for r in range(4): k(f"v_{'add' if r < 2 else 'sub'}_f32 v{a+r}, v{a+r}, v{a+4+r}")
        for r in range(4): k(f"v_mul_f32 v{a+r}, {sc01[r] if (slot == 0 and r < 2) else 's36'}, v{a+r}")
        k(f"v_cvt_pk_bf16_f32 v{dst}, v{a}, v{a+1}\nv_cvt_pk_bf16_f32 v{dst+1}, v{a+2}, v{a+3}")
    for slot in range(5): fin(slot, ('v9', 'v9'), ACC+8*slot+4)
    k(f"v_cmp_eq_f32 vcc, 0, v10\nv_cndmask_b32 v13, 1.0, 0, vcc")
    sumsq(k, 'p1', lambda s_: ACC+8*s_, 13)
    y2_exchange_store(k, 'p1', 37, SS0, XO + 61*1024, ST, lambda s_: ACC+8*s_+4, 8)
    k(f"s_mov_b32 s36, {fl(SC)}")
    stamp(k, 7)
    k("""s_barrier
s_cmp_eq_u32 s46, 1
s_cbranch_scc1 L_k1_t1
s_cmp_eq_u32 s46, 2
s_cbranch_scc1 L_k1_end""")
    stamp(k, 8)
    k(f"""v_lshrrev_b32 v11, 2, v2           ; r
v_and_b32 v12, 2, v11
v_and_b32 v13, 1, v3
v_lshl_or_b32 v12, v13, 2, v12     ; 2f
s_lshl_b32 s3, s20, 1
v_xor_b32 v12, s3, v12
v_lshlrev_b32 v12, 4, v12
v_lshl_add_u32 v12, v11, 7, v12
v_and_b32 v13, 3, v2
v_lshl_add_u32 v12, v13, 3, v12
v_lshl_add_u32 v12, v3, 10, v12
v_add_u32 v11, {UP}, v12
v_add_u32 v12, {XO}, v12""")
    def trd(r, kk):
        for hh in range(2):
            va, o = ('v11', kk*4096) if kk < 10 else ('v12', (kk-10)*4096)
            r(f"ds_read_b64_tr_b16 {vr(XB+4*kk+2*hh,2)}, {va} offset:{o + 512*hh}")
    adr = Rec()
    adr(f"""s_lshl2_add_u32 s3, s47, s20
s_lshl_b32 s3, s3, 4
v_add_u32 v5, s3, v2
s_mov_b32 s3, {hex((1<<32)//18+1)}
v_mul_hi_u32 v6, v5, s3
v_mul_u32_u24 v7, 18, v6
v_sub_u32 v7, v5, v7               ; dd
v_lshrrev_b32 v5, 5, v6            ; which
v_and_b32 v8, 1, v6                ; hl
v_bfe_u32 v13, v6, 1, 4
v_mul_u32_u24 v13, {WQ_HP//16}, v13
v_lshlrev_b32 v14, 1, v5
v_add_u32 v14, -2, v14
v_cmp_eq_u32 vcc, 0, v5
v_mov_b32 v15, 0x5a
v_cndmask_b32 v14, v14, v15, vcc
v_add_u32 v14, v14, v8
v_lshl_add_u32 v14, v14, 6, v7
v_mov_b32 v15, 4
v_cndmask_b32 v15, v15, 2, vcc
v_add_u32 v6, -16, v7              ; x
v_lshl_add_u32 v128, v8, 2, v6
v_and_b32 v5, 1, v5
v_lshl_add_u32 v128, v5, 3, v128
v_add_u32 v5, 10, v128
v_cndmask_b32 v128, v128, v5, vcc
v_add_u32 v128, 0x1200, v128
v_cmp_lt_u32 vcc, 15, v7
v_cndmask_b32 v14, v14, v128, vcc
v_cndmask_b32 v15, v15, 1, vcc
v_add_u32 v14, v14, v13
v_lshl_add_u32 v14, v3, 4, v14
v_lshlrev_b32 v14, 4, v14
v_lshlrev_b32 v15, 10, v15
s_lshl_b32 s39, s24, 1
v_mad_u32_u24 v5, v15, s39, v14
v_add_u32 v6, v5, v15
s_lshr_b32 s39, s27, 1
v_mad_u32_u24 v7, v15, s39, v14
s_and_b32 s3, s27, 1
s_lshl_b32 s3, s3, 3
s_mov_b32 s38, {hex(WQ)}
s_add_u32 s39, s3, s38""")
    emit(k, sym_gemm(False, adr.l, xrd=trd))
    stamp(k, 9)
    for p in range(2):
        d = ACC + 16*p + 4
        fin(2*p, ('v9', 'v10'), d); fin(2*p+1, None, d+2)
        k(f"buffer_store_dwordx4 {vr(d)}, v{5+p}, s[8:11], s38 offen {ST}")
    def body():
        fin(4, None, ACC+36)
        k(f"buffer_store_dwordx2 {vr(ACC+36,2)}, v7, s[8:11], s39 offen {ST}")
    opt_slot(k, 'j3', 4, body)
    k("s_branch L_k1_end")
    k(f"""L_k1_t1:
v_mul_u32_u24 v11, 576, v2
s_lshl_b32 s3, s20, 2
v_add_u32 v13, s3, v3
v_lshl_add_u32 v11, v13, 3, v11
v_lshl_add_u32 v13, v13, 2, 1
v_add_u32 v12, {XO}, v11
v_add_u32 v11, {UP}, v11
v_lshlrev_b32 v13, 13, v13
v_lshl_add_u32 v13, v2, 4, v13     ; k*8192 + i*16
s_and_b32 s3, s47, 3
s_lshl_b32 s38, s3, 11
s_lshr_b32 s3, s47, 2
s_lshl_b32 s3, s3, 8
s_add_u32 s38, s38, s3
s_add_u32 s38, s38, {hex(WT)}
s_mov_b32 s39, s38
v_lshlrev_b32 v14, 4, v2
v_add_u32 v15, {(256+3)*8192}, v13
s_cmp_eq_u32 s20, 1
s_cselect_b32 s3, 3, 7
v_cmp_eq_u32 vcc, s3, v3
v_cndmask_b32 v14, v15, v14, vcc
s_mov_b32 s40, 0x05040100
s_mov_b32 s41, 0x07060302""")
    def t1rd(it):
        b = XB + 16*(it % 2)
        for r in range(4):
            k(f"ds_read_b64 {vr(b+4*r,2)}, v11 offset:{r*9216 + 128*it}\nds_read_b64 {vr(b+4*r+2,2)}, v12 offset:{r*9216 + 128*it}")
    t1rd(0)
    for it in range(5):
        if it == 4: k("s_cmp_ge_u32 s20, 2\ns_cbranch_scc1 L_k1_end")
        if it + 1 < 5: t1rd(it+1)
        b = XB + 16*(it % 2)
        for x in range(4):
            o = XB + 32 + 4*((4*it + x) % 8)
            for r in range(4): k(f"v_perm_b32 v{o+r}, v{b+4*r+2+x//2}, v{b+4*r+x//2}, s{40 + x % 2}")
            if it == 4 and x == 3: k(f"buffer_store_dwordx4 {vr(o)}, v14, s[8:11], s39 offen {ST}")
            else: k(f"buffer_store_dwordx4 {vr(o)}, v13, s[8:11], s38 offen {ST}\ns_add_u32 s38, s38, {8192 if x < 3 else 61*8192}")
    k("L_k1_end:")
    endpgm(k)
    k("L_k1_exit:\ns_endpgm")
    return k
```

```python
from gen3a import *

S1F = "sc1"
C_B = lambda n: CNT + n*65536
C_J = CNT
C_G = lambda l: C_J + (1+l)*4096
L_LT, L_Q, L_RED, L_FIN, L_EX = 72*1024, 90*1024, 128*1024, 146*1024, 152*1024
L_P2 = 90*1024
SPIN = 0x20000

def arrive(k, tag, soff, rep=False):
    k(f"""v_mov_b32 v8, 1
v_lshlrev_b32 v9, 11, v1
s_waitcnt vmcnt(0)
s_barrier
s_cmp_lg_u32 s20, 0
s_cbranch_scc1 L_{tag}_arr
s_mov_b32 exec_hi, 0""")
    if not rep: k("s_mov_b32 exec_lo, 1")
    k.optional(True)
    k(f"buffer_atomic_add v8, v9, s[8:11], s{soff} offen sc1")
    k.optional(False)
    k(f"s_mov_b64 exec, -1\nL_{tag}_arr:")

PSLEEP = int(os.environ.get('PSLEEP', 1))
def poll(k, tag, soff, nsh, target, wave=0):
    k(f"""s_cmp_lg_u32 s20, {wave}
s_cbranch_scc1 L_{tag}_pd
v_lshlrev_b32 v9, 7, v1
s_mov_b32 s34, 0
s_mov_b64 exec, {hex((1 << nsh) - 1)}
L_{tag}_pl:""")
    k.optional(True)
    k(f"""buffer_load_dword v8, v9, s[8:11], s{soff} offen sc1
s_waitcnt vmcnt(0)
v_cmp_gt_u32 vcc, {target}, v8""")
    k.optional(False)
    k(f"""s_add_u32 s34, s34, 1
s_cmp_gt_u32 s34, {SPIN}
s_cbranch_scc1 L_{tag}_px
s_cbranch_vccz L_{tag}_px""")
    if PSLEEP: k(f"s_sleep {PSLEEP}")
    k(f"""s_branch L_{tag}_pl
L_{tag}_px:
s_mov_b64 exec, -1
L_{tag}_pd:
s_barrier""")
def rep_addr(k, dst, base, sel=None):
    k(f"s_and_b32 s{dst}, s2, 31\ns_lshl_b32 s{dst}, s{dst}, 11\ns_add_u32 s{dst}, s{dst}, {hex(base)}")
    if sel: k(f"s_lshl_b32 s3, s{sel}, 17\ns_add_u32 s{dst}, s{dst}, s3")
def shard_addr(k, dst, base, sel=None):
    k(f"s_and_b32 s{dst}, s2, 15\ns_lshl_b32 s{dst}, s{dst}, 7\ns_add_u32 s{dst}, s{dst}, {hex(base)}")
    if sel: k(f"s_lshl_b32 s3, s{sel}, 17\ns_add_u32 s{dst}, s{dst}, s3")

C_P = C_B(0)
def scan(k, dst, regs):
    regs = list(regs)
    k(f"v_max_u32 v{dst}, v{regs[0]}, v{regs[1]}")
    for i in range(2, len(regs), 2): k(f"v_max3_u32 v{dst}, v{regs[i]}, v{regs[i+1]}, v{dst}")
def p3_map(k):
    k("""s_and_b32 s3, s2, 7
s_lshr_b32 s21, s2, 3
s_lshr_b32 s22, s3, 1
s_lshl_b32 s22, s22, 2
s_and_b32 s23, s21, 3
s_add_u32 s22, s22, s23
s_and_b32 s23, s3, 1
s_lshl_b32 s23, s23, 3
s_lshr_b32 s21, s21, 2
s_add_u32 s23, s23, s21
s_lshl2_add_u32 s24, s22, s20""")

KV0 = int(os.environ.get('KV0', 0)); KVE = int(os.environ.get('KVE', 10))
def kv_dma(n0, n1):
    return [f"buffer_load_dwordx4 v4, s[8:11], s61 offen lds\ns_add_u32 s61, s61, 4096\ns_add_u32 m0, m0, 4096" for m in range(n0, n1)]
def kv_last(k, tag):
    k(f"s_cmp_ge_u32 s20, 2\ns_cbranch_scc1 L_{tag}_n22")
    k.optional(True); emit(k, kv_dma(22, 23)); k.optional(False)
    k(f"L_{tag}_n22:")
def kv_dma_start(k, first=0):
    k(f"s_add_u32 s61, s60, {first*4096}\ns_lshl_b32 s3, s20, 10\ns_add_u32 m0, s3, {first*4096}")

def phase_P2(k):
    RAW, SSV = 8, 24
    C1, S1, N1, TW1, TW2 = 32, 40, 48, 56, 72
    XR = lambda c: 88 + 16*c
    XI = lambda c: 96 + 16*c
    AC = lambda c: 120 + 16*c
    PK = lambda c: 152 + 8*c
    WR = lambda c: 168 + 16*c
    WI = lambda c: 176 + 16*c
    TM = lambda c: 200 + 4*c
    TMP = 208; SEL = 224; SSR = 120
    DAT = lambda c: 32*c
    F2, F4 = 64, 88
    L_X1, L_F1, L_F2, L_U = 0, 16384, 40960, 47104
    k(f"""s_cmp_eq_u32 s45, 0
s_cselect_b32 s40, {hex(XH0)}, {hex(XH0)}
s_mov_b32 s3, {hex(XH2)}
s_cselect_b32 s40, s40, s3
s_mov_b32 s41, {hex(XH1)}
s_mov_b32 s3, {hex(XH3)}
s_cselect_b32 s41, s41, s3
s_mov_b32 s42, {hex(SS0)}
s_mov_b32 s3, {hex(SS2)}
s_cselect_b32 s42, s42, s3
s_lshr_b32 s25, s20, 1             ; j2
s_and_b32 s26, s20, 1              ; t
s_lshl_b32 s30, s20, 13
s_add_u32 s30, s30, s42            ; SS
s_add_u32 s31, s30, 4096
s_mul_i32 s33, s98, {JP_ST}
s_lshl_b32 s3, s20, 12
s_add_u32 s33, s33, s3
s_add_u32 s44, s33, s40
s_add_u32 s33, s33, s41
s_lshl_b32 s29, s98, 14
s_lshl_b32 s28, s20, 11
s_add_u32 s29, s29, s28
s_add_u32 s29, s29, {hex(WT)}
s_add_u32 s35, s29, 8192
v_add_u32 v5, {L_P2}, v4""")
    def data_loads():
        return ([f"buffer_load_dwordx4 {vr(SSR+4*h)}, v4, s[8:11], s{30+h//4} offen offset:{1024*(h % 4)} {S1F}" for h in range(8)] +
                [f"buffer_load_dwordx4 {vr(RAW+4*v)}, v4, s[8:11], s44 offen offset:{1024*v} {S1F}" for v in range(4)])
    def wt_loads(): return [f"buffer_load_dwordx4 {vr(WI(c)+4*t)}, v4, s[8:11], s{(29,35)[c]} offen offset:{1024*t}" for c in range(2) for t in range(2)]
    aF1, aSEL, aTW = 136, 160, 168
    k("s_cmp_lg_u32 s45, 0\ns_cbranch_scc1 L_p2_l1")
    FA, BA, G4 = TMP+8, TMP+9, TMP+10
    c1 = Rec()
    c1(f"""s_lshl_b32 s3, s20, 4
v_add_u32 v{FA}, s3, v2
v_cvt_f32_u32 v{FA}, v{FA}
v_mul_f32 v{FA}, {fl(1/64)}, v{FA}
v_lshlrev_b32 v{G4}, 2, v3
v_cvt_f32_u32 v{G4}, v{G4}
v_mul_f32 v{BA}, v{FA}, v{G4}
s_mul_i32 s3, s20, 6144
v_add_u32 v7, s3, v5""")
    for ks in range(2):
        for q in range(4):
            for h in range(2):
                u = 2*q + h; cst = 32*ks + 16*(u//4) + u % 4
                c1(f"v_fmamk_f32 v{TMP+h}, v{FA}, {fl(float(cst))}, v{BA}")
            c1(f"""v_cos_f32 v{TMP+2}, v{TMP}
v_cos_f32 v{TMP+3}, v{TMP+1}
v_sin_f32 v{TMP+4}, v{TMP}
v_sin_f32 v{TMP+5}, v{TMP+1}
v_cvt_pk_bf16_f32 v{C1+4*ks+q}, v{TMP+2}, v{TMP+3}
v_cvt_pk_bf16_f32 v{S1+4*ks+q}, v{TMP+4}, v{TMP+5}
v_cvt_pk_bf16_f32 v{N1+4*ks+q}, -v{TMP+4}, -v{TMP+5}""")
        for kind, b in enumerate((C1, S1, N1)):
            c1(f"ds_write_b128 v7, {vr(b+4*ks)} offset:{L_F1 + (kind*2+ks)*1024}")
    c1(f"""s_lshl_b32 s3, s25, 4
v_add_u32 v{TMP+11}, s3, v2
v_cvt_f32_u32 v{TMP+11}, v{TMP+11}
v_mul_f32 v{TMP+11}, {fl(1/32)}, v{TMP+11}
s_lshl_b32 s3, s26, 4
v_cvt_f32_u32 v{TMP+12}, s3
v_add_f32 v{TMP+12}, v{TMP+12}, v{G4}
v_mul_f32 v{TMP+12}, v{TMP+12}, v{TMP+11}
s_lshl_b32 s3, s25, 10
s_lshl3_add_u32 s3, s26, s3
v_add_u32 v7, s3, v5""")
    P0 = PK(0)
    for q in range(2):
        for h in range(2):
            c1(f"v_fmamk_f32 v{TMP+h}, v{TMP+11}, {fl(float(2*q+h))}, v{TMP+12}")
        c1(f"""v_cos_f32 v{TMP+2}, v{TMP}
v_cos_f32 v{TMP+3}, v{TMP+1}
v_sin_f32 v{TMP+4}, v{TMP}
v_sin_f32 v{TMP+5}, v{TMP+1}
v_cvt_pk_bf16_f32 v{P0+q}, v{TMP+2}, v{TMP+3}
v_cvt_pk_bf16_f32 v{P0+2+q}, v{TMP+4}, v{TMP+5}
v_cvt_pk_bf16_f32 v{P0+4+q}, -v{TMP+4}, -v{TMP+5}""")
    for kind in range(3): c1(f"ds_write_b64 v7, {vr(P0+2*kind, 2)} offset:{L_F2 + kind*2048}")
    c1(f"v_mul_f32 v{FA}, {fl(1/32)}, v{FA}\nv_mul_f32 v{BA}, {fl(1/32)}, v{BA}")
    for e in range(8):
        cst = 16*(e//4) + e % 4
        c1(f"v_fmamk_f32 v{TMP+e%2}, v{FA}, {fl(float(cst))}, v{BA}\nv_cos_f32 v{TW1+e}, v{TMP+e%2}\nv_sin_f32 v{TW1+8+e}, v{TMP+e%2}")
    c1(f"""s_lshl_b32 s3, s20, 4
v_cvt_f32_u32 v{TMP+12}, s3
v_add_f32 v{TMP+12}, v{TMP+12}, v{G4}
v_cvt_f32_u32 v{TMP+11}, v2""")
    for t in range(2):
        c1(f"""v_add_f32 v{FA}, {fl(16.0*t)}, v{TMP+11}
v_mul_f32 v{FA}, {fl(1/2048)}, v{FA}
v_mul_f32 v{BA}, v{FA}, v{TMP+12}""")
        for r in range(4):
            e = 4*t + r
            c1(f"v_fmamk_f32 v{TMP+e%2}, v{FA}, {fl(float(r))}, v{BA}\nv_cos_f32 v{TW2+e}, v{TMP+e%2}\nv_sin_f32 v{TW2+8+e}, v{TMP+e%2}")
    c1(f"""v_and_b32 v{TMP}, 1, v2
v_lshlrev_b32 v{TMP}, 4, v{TMP}
v_mov_b32 v{TMP+1}, 0x3f80
v_lshlrev_b32 v{TMP}, v{TMP}, v{TMP+1}
v_lshrrev_b32 v{TMP+1}, 1, v2
v_lshlrev_b32 v{TMP+2}, 1, v3
v_cmp_eq_u32 vcc, v{TMP+1}, v{TMP+2}
v_cndmask_b32 v{SEL}, 0, v{TMP}, vcc
v_add_u32 v{TMP+2}, 1, v{TMP+2}
v_cmp_eq_u32 vcc, v{TMP+1}, v{TMP+2}
v_cndmask_b32 v{SEL+4}, 0, v{TMP}, vcc""")
    for r in range(4): c1(f"v_accvgpr_write_b32 a{aSEL+r}, v{SEL}\nv_accvgpr_write_b32 a{aSEL+4+r}, v{SEL+4}")
    f4 = lambda mt, kind, ks: ar(F4 + 24*mt + 8*kind + 4*ks)
    nf1 = min(i for i, l in enumerate(c1.l) if 'ds_write_b128' in l)
    nf2 = max(i for i, l in enumerate(c1.l) if 'ds_write_b64' in l) + 1
    stamp(k, 1, 'B')
    emit(k, c1.l[:nf1])
    stamp(k, 2, 'B')
    k("s_waitcnt lgkmcnt(0)")
    stamp(k, 3, 'B')
    srd(k, 8, 4, 5, WS_END)
    kv_dma_start(k)
    vm = data_loads() + wt_loads() + kv_dma(0, KV0)
    emit(k, merge(vm[:12], c1.l[nf1:nf2]))
    k(f"s_mul_i32 s3, s25, 12288\nv_add_u32 v{TMP+14}, s3, v5\ns_waitcnt lgkmcnt(0)\ns_barrier")
    stamp(k, 4, 'B')
    f2r = [f"ds_read_b128 {ar(F2+8*kind+4*t)}, v5 offset:{L_F2 + kind*2048 + t*1024}" for kind in range(3) for t in range(2)]
    f4r = [f"ds_read_b128 {f4(mt,kind,ks)}, v{TMP+14} offset:{L_F1 + mt*6144 + (kind*2+ks)*1024}" for mt in range(2) for kind in range(3) for ks in range(2)]
    k(f"s_mul_i32 s3, s20, 6144\nv_add_u32 v{TMP+13}, s3, v5")
    f1r = [f"ds_read_b128 {ar(aF1+4*i)}, v{TMP+13} offset:{L_F1 + i*1024}" for i in range(6)]
    emit(k, merge(merge(c1.l[nf2:], f1r + f2r + f4r), vm[12:]))
    stamp(k, 5, 'B')
    k(f"s_waitcnt vmcnt({KV0+4}) lgkmcnt(0)")
    stamp(k, 6, 'B')
    k(f"""s_branch L_p2_go
L_p2_l1:""")
    kv_dma_start(k)
    k(f"s_lshl_b32 s3, s25, 10\ns_lshl3_add_u32 s3, s26, s3\nv_add_u32 v7, s3, v5")
    emit(k, merge(wt_loads() + kv_dma(0, KVE), [f"v_accvgpr_read_b32 v{TW1+r}, a{aTW+r}" for r in range(32)]))
    k("s_mov_b32 s34, 0\nL_p2_poll:")
    emit(k, data_loads())
    scan(k, TMP, list(range(SSR, SSR+32)) + list(range(RAW, RAW+16)))
    k(f"""v_cmp_eq_u32 vcc, -1, v{TMP}
s_add_u32 s34, s34, 1
s_cmp_gt_u32 s34, {SPIN}
s_cbranch_scc1 L_p2_go
s_cbranch_vccnz L_p2_poll
L_p2_go:
s_mov_b32 s32, {fl(2048.0*2048.0/576)}
v_mov_b32 v{TMP+15}, {fl(1e-5*2048*2048)}
s_lshl_b32 s3, s20, 10
v_add_u32 v{TMP+14}, s3, v5""")
    stamp(k, 1); count(k, 1, 34)
    k(f"s_cmp_eq_u32 s98, 0\ns_cselect_b32 s31, 0, 0xffff0000")
    for v in range(4):
        for h in range(2):
            d = vr(SSV + 4*(v//2))
            k(f"{MF} {d}, {ar(aSEL+4*(v % 2))}, {vr(SSR+8*v+4*h)}, {'0' if v % 2 == 0 and h == 0 else d}")
    for c in range(2):
        for u in range(8):
            k(f"v_lshlrev_b32 v{XR(c)+u}, 16, v{RAW+2*u+c}\nv_and_b32 v{XI(c)+u}, {'s31' if c == 0 else '0xffff0000'}, v{RAW+2*u+c}")
    for u in range(8):
        k(f"v_fma_f32 v{SSV+u}, v{SSV+u}, s32, v{TMP+15}\nv_rsq_f32 v{SSV+u}, v{SSV+u}")
    for c in range(2):
        for q in range(4):
            k(f"v_pk_mul_f32 {vr(TMP,2)}, {vr(XR(c)+2*q,2)}, {vr(SSV+2*q,2)}\nv_pk_mul_f32 {vr(TMP+2,2)}, {vr(XI(c)+2*q,2)}, {vr(SSV+2*q,2)}")
            k(f"v_cvt_pk_bf16_f32 v{PK(c)+q}, v{TMP}, v{TMP+1}\nv_cvt_pk_bf16_f32 v{PK(c)+4+q}, v{TMP+2}, v{TMP+3}")
        k(f"ds_write_b128 v{TMP+14}, {vr(PK(c))} offset:{L_X1+8192*c}\nds_write_b128 v{TMP+14}, {vr(PK(c)+4)} offset:{L_X1+8192*c+4096}")
    k(f"s_waitcnt vmcnt({KV0}) lgkmcnt(0)\ns_barrier")
    stamp(k, 2)
    dat = lambda c, pl, ks, t: ar(DAT(c) + 16*pl + 4*(2*ks+t))
    def rd1(c):
        return [f"ds_read_b128 {dat(c, pl, ks, t)}, v5 offset:{L_X1 + 8192*c + 4096*pl + 1024*(2*ks+t)}" for t in range(2) for ks in range(2) for pl in range(2)]
    AR = lambda c, t: vr(AC(c) + 4*t)
    AI = lambda c, t: vr(AC(c) + 8 + 4*t)
    def st1(c):
        r = Rec()
        for t in range(2):
            for ks in range(2):
                r(f"{MF} {AR(c,t)}, {dat(c,0,ks,t)}, {ar(aF1+4*ks)}, {'0' if ks == 0 else AR(c,t)}")
                r(f"{MF} {AI(c,t)}, {dat(c,1,ks,t)}, {ar(aF1+4*ks)}, {'0' if ks == 0 else AI(c,t)}")
                r(f"{MF} {AR(c,t)}, {dat(c,1,ks,t)}, {ar(aF1+8+4*ks)}, {AR(c,t)}")
                r(f"{MF} {AI(c,t)}, {dat(c,0,ks,t)}, {ar(aF1+16+4*ks)}, {AI(c,t)}")
        return r.l
    def cmul(c, cr, ci, conj):
        r = Rec(); T = TM(c)
        for q in range(4):
            for h in range(2):
                e = 2*q + h; xr = AC(c) + e; xi = AC(c) + 8 + e
                r(f"v_mul_f32 v{T+h}, v{xr}, v{cr+e}\nv_mul_f32 v{T+2+h}, v{xi}, v{cr+e}")
                if conj: r(f"v_fmac_f32 v{T+h}, v{xi}, v{ci+e}\nv_fma_f32 v{T+2+h}, -v{xr}, v{ci+e}, v{T+2+h}")
                else: r(f"v_fma_f32 v{T+h}, -v{xi}, v{ci+e}, v{T+h}\nv_fmac_f32 v{T+2+h}, v{xr}, v{ci+e}")
            r(f"v_cvt_pk_bf16_f32 v{PK(c)+q}, v{T}, v{T+1}\nv_cvt_pk_bf16_f32 v{PK(c)+4+q}, v{T+2}, v{T+3}")
        return r.l
    C2 = lambda t: ar(F2+4*t); S2 = lambda t: ar(F2+8+4*t); N2 = lambda t: ar(F2+16+4*t)
    def st2(c):
        r = Rec(); PR, PI = vr(PK(c)), vr(PK(c)+4)
        for t in range(2):
            r(f"{MF} {AR(c,t)}, {C2(t)}, {PR}, 0\n{MF} {AI(c,t)}, {C2(t)}, {PI}, 0")
            r(f"{MF} {AR(c,t)}, {S2(t)}, {PI}, {AR(c,t)}\n{MF} {AI(c,t)}, {N2(t)}, {PR}, {AI(c,t)}")
        return r.l
    def st3(c):
        r = Rec(); PR, PI = vr(PK(c)), vr(PK(c)+4)
        for t in range(2):
            r(f"{MF} {AR(c,t)}, {PR}, {C2(t)}, 0\n{MF} {AI(c,t)}, {PI}, {C2(t)}, 0")
            r(f"{MF} {AR(c,t)}, {PI}, {N2(t)}, {AR(c,t)}\n{MF} {AI(c,t)}, {PR}, {S2(t)}, {AI(c,t)}")
        return r.l
    def wru(c):
        return [f"ds_write_b64 v7, {vr(PK(c)+4*pl+2*t, 2)} offset:{L_U + 8192*c + pl*4096 + t*2048}" for pl in range(2) for t in range(2)]
    misc = Rec()
    for c in range(2):
        for e in range(8): misc(f"v_lshlrev_b32 v{WR(c)+e}, 16, v{WI(c)+e}\nv_and_b32 v{WI(c)+e}, 0xffff0000, v{WI(c)+e}")
    mv = lambda m, v, lead=2: merge(m, v, ratio=lead)
    emit(k, rd1(0))
    emit(k, merge(st1(0), merge(misc.l, rd1(1))))
    emit(k, mv(st1(1), cmul(0, TW1, TW1+8, True)))
    emit(k, mv(st2(0), cmul(1, TW1, TW1+8, True)))
    emit(k, mv(st2(1), cmul(0, WR(0), WI(0), False)))
    emit(k, mv(st3(0), cmul(1, WR(1), WI(1), False)))
    emit(k, mv(st3(1), cmul(0, TW2, TW2+8, False)))
    emit(k, wru(0))
    emit(k, cmul(1, TW2, TW2+8, False))
    emit(k, wru(1))
    k(f"""s_lshl_b32 s3, s26, 11
v_add_u32 v{TMP+14}, s3, v5
s_or_b32 s31, s31, 0xffff
s_waitcnt lgkmcnt(0)
s_barrier""")
    ud = lambda c, pl, ks: ar(DAT(c) + 8*pl + 4*ks)
    for c in range(2):
        for ks in range(2):
            for pl in range(2):
                k(f"ds_read_b128 {ud(c,pl,ks)}, v{TMP+14} offset:{L_U + 8192*c + pl*4096 + ks*1024}")
    def st4(c, mt):
        r = Rec(); r_, i_ = vr(XR(c)+4*mt), vr(XI(c)+4*mt)
        for ks in range(2):
            r(f"{MF} {r_}, {f4(mt,0,ks)}, {ud(c,0,ks)}, {r_}\n{MF} {i_}, {f4(mt,0,ks)}, {ud(c,1,ks)}, {i_}")
            r(f"{MF} {r_}, {f4(mt,2,ks)}, {ud(c,1,ks)}, {r_}\n{MF} {i_}, {f4(mt,1,ks)}, {ud(c,0,ks)}, {i_}")
        return r.l
    OUT = PK(0)
    def fin(mt):
        r = Rec()
        for v in range(2*mt, 2*mt+2):
            for u in (2*v, 2*v+1):
                r(f"v_cvt_pk_bf16_f32 v{OUT+2*u}, v{XR(0)+u}, v{XI(0)+u}\nv_bfi_b32 v{OUT+2*u}, s31, v{OUT+2*u}, v{RAW+2*u}")
                r(f"v_cvt_pk_bf16_f32 v{OUT+2*u+1}, v{XR(1)+u}, v{XI(1)+u}")
                r(f"v_min_u32 v{OUT+2*u}, -2, v{OUT+2*u}\nv_min_u32 v{OUT+2*u+1}, -2, v{OUT+2*u+1}")
            r(f"buffer_store_dwordx4 {vr(OUT+4*v)}, v4, s[8:11], s33 offen offset:{1024*v} {S1F}")
        return r.l
    emit(k, st4(0, 0)); emit(k, st4(1, 0)); emit(k, st4(0, 1))
    emit(k, merge(st4(1, 1), fin(0)))
    emit(k, fin(1))
    stamp(k, 3)
    return [f"v_accvgpr_write_b32 a{aTW+r}, v{TW1+r}" for r in range(32)]

def role_J2(k, first):
    LF = 90*1024
    k(f"""s_sub_u32 s3, s98, {first}
s_and_b32 s23, s3, 7
s_lshr_b32 s24, s3, 3
s_cmp_eq_u32 s24, 8
s_cselect_b32 s24, s23, s24        ; cb
s_cselect_b32 s23, 8, s23
s_lshl2_add_u32 s25, s23, s20      ; mt""")
    cb_setup(k, 24)
    k(f"""s_sub_u32 s3, s25, 32
s_lshr_b32 s28, s3, 1
s_lshl_b32 s28, s28, 3
s_and_b32 s3, s25, 1
s_add_u32 s28, s28, s3
s_mul_i32 s29, s25, 18
s_cmp_ge_u32 s25, 32
s_cselect_b64 vcc, -1, 0""")
    for rho in range(2):
        k(f"""v_lshrrev_b32 v10, 3, v1
v_add_u32 v10, {8*rho}, v10
v_add_u32 v11, s29, v10
v_lshrrev_b32 v12, 2, v10
v_lshl_add_u32 v12, v12, 1, s28
v_bfe_u32 v13, v10, 1, 1
v_lshl_add_u32 v12, v12, 1, v13
v_mul_u32_u24 v12, 18, v12
v_and_b32 v13, 1, v10
v_add3_u32 v12, v12, v13, 16
v_cndmask_b32 v11, v11, v12, vcc
v_mul_u32_u24 v{5+rho}, 1152, v11""")
    rows_dma_setup(k, 5, 6)
    srd(k, 12, 52, 53, 576*1152)
    stamp(k, 1, 'B')
    def lines(tag, n):
        k(f"""s_mov_b32 s40, {n}
L_{tag}:
s_lshl_b32 s3, s37, 11
s_add_u32 m0, s3, s36
s_lshl_b32 s3, s37, 7
buffer_load_dwordx4 v5, s[12:15], s3 offen lds
s_add_u32 m0, m0, 1024
s_add_u32 s37, s37, 1
buffer_load_dwordx4 v6, s[12:15], s3 offen lds
s_cmp_eq_u32 s37, 9
s_cselect_b32 s37, 0, s37
s_sub_u32 s40, s40, 1
s_cmp_lg_u32 s40, 0
s_cbranch_scc1 L_{tag}""")
    k("s_mul_i32 s36, s20, 18432\ns_mov_b32 s37, s24")
    lines('j2xa', 3)
    k(f"v_add_u32 v7, {LF}, v4\ns_mov_b32 s41, 1")
    stamp(k, 2, 'B')
    f_image(k, "j2", "v7", 41)
    stamp(k, 3, 'B')
    lines('j2xb', 6)
    k(f"v_add_u32 v5, {LF}, v4")
    rows_read_addr(k, 10, 11, 0)
    k(f"""v_and_b32 v8, 1, v2
v_lshlrev_b32 v8, 4, v8
v_mov_b32 v9, 0x3f80
v_lshlrev_b32 v8, v8, v9
v_lshrrev_b32 v9, 1, v2
v_lshlrev_b32 v12, 1, v3
v_cmp_eq_u32 vcc, v9, v12
v_cndmask_b32 v130, 0, v8, vcc
v_add_u32 v12, 1, v12
v_cmp_eq_u32 vcc, v9, v12
v_cndmask_b32 v131, 0, v8, vcc
v_mov_b32 v128, 0
v_mov_b32 v129, 0
v_mov_b32 v132, 0
v_mov_b32 v133, 0
v_and_b32 v8, 2, v2
v_cmp_eq_u32 vcc, 0, v8
v_mov_b32 v9, -1.0
v_cndmask_b32 v14, v9, 1.0, vcc
s_cmp_eq_u32 s24, 0
s_mov_b32 s36, {fl(SC)}
s_cselect_b32 s3, {fl(1/24)}, s36
v_mov_b32 v12, s36
v_mov_b32 v13, s3
v_cmp_gt_u32 vcc, 2, v2
v_cndmask_b32 v13, v12, v13, vcc
s_lshl_b32 s3, s24, 11
v_add_u32 v6, s3, v10
v_add_u32 v7, s3, v11
s_bitcmp1_b32 s27, 1
s_cselect_b64 vcc, -1, 0
v_cndmask_b32 v15, v10, v11, vcc
s_waitcnt vmcnt(0)""")
    stamp(k, 4, 'B')
    rows_read(k, 10, 11)
    k(f"""ds_read_b128 v[136:139], v6
ds_read_b128 v[140:143], v7
ds_read_b128 v[144:147], v15 offset:{8*2048}
s_waitcnt vmcnt(0) lgkmcnt(0)
s_barrier""")
    stamp(k, 2)
    stamp(k, 5, 'B')
    kv_dma_start(k)
    emit(k, sym_gemm(True, kv_dma(0, 22), va='v5'))
    stamp(k, 6, 'B')
    kv_last(k, 'j2')
    TR = 148
    for slot in range(4):
        k(f"{MF} {vr(TR+4*slot)}, {vr(136+4*(slot//2))}, {('v[130:133]', 'v[128:131]')[slot % 2]}, 0")
    k(f"{MF} {vr(TR+16)}, v[144:147], v[130:133], 0\n{MF} {vr(TR+20)}, v[144:147], v[128:131], 0")
    H = lambda s_: 16 + 2*s_
    Tt = lambda s_: 26 + 2*s_
    for slot in range(5):
        a = ACC + 8*slot
        for r in range(4): k(f"v_fma_f32 v{a+r}, v{a+4+r}, v14, v{a+r}")
        for r in range(4): k(f"v_mul_f32 v{a+r}, {'v13' if slot == 0 else 'v12'}, v{a+r}")
        k(f"v_cvt_pk_bf16_f32 v{H(slot)}, v{a}, v{a+1}\nv_cvt_pk_bf16_f32 v{H(slot)+1}, v{a+2}, v{a+3}")
    k("s_bitcmp1_b32 s27, 0\ns_cselect_b64 vcc, -1, 0")
    for r in range(4): k(f"v_cndmask_b32 v{TR+16+r}, v{TR+16+r}, v{TR+20+r}, vcc")
    for slot in range(5):
        k(f"v_cvt_pk_bf16_f32 v{Tt(slot)}, v{TR+4*slot}, v{TR+4*slot+1}\nv_cvt_pk_bf16_f32 v{Tt(slot)+1}, v{TR+4*slot+2}, v{TR+4*slot+3}")
    k(f"""s_and_b32 s38, s20, 1
s_lshl_b32 s3, s20, 12
s_add_u32 s3, s3, {136*1024}
v_lshl_add_u32 v5, v1, 3, s3
v_xor_b32 v6, 0x1000, v5
s_cmp_eq_u32 s38, 0
s_cselect_b64 vcc, -1, 0
s_mov_b32 s3, {hex(WOT)}
s_cselect_b32 s39, {hex(WOH)}, s3
s_mul_i32 s3, s24, {90*1024}
s_add_u32 s39, s39, s3
s_lshr_b32 s3, s25, 1
s_lshl_b32 s37, s3, 10
s_add_u32 s37, s37, s39
s_add_u32 s37, s37, {72*1024}
s_lshl_b32 s3, s3, 12
s_add_u32 s39, s39, s3""")
    for slot in range(5):
        for r in range(2):
            k(f"v_cndmask_b32 v{36+2*slot+r}, v{H(slot)+r}, v{Tt(slot)+r}, vcc\nv_cndmask_b32 v{H(slot)+r}, v{Tt(slot)+r}, v{H(slot)+r}, vcc")
        k(f"ds_write_b64 v5, {vr(36+2*slot,2)} offset:{512*slot}")
    k("s_waitcnt lgkmcnt(0)\ns_barrier")
    stamp(k, 7, 'B')
    for slot in range(5): k(f"ds_read_b64 {vr(36+2*slot,2)}, v6 offset:{512*slot}")
    for slot in range(5):
        o = 48 + 4*slot
        for r in range(2):
            k(f"v_cndmask_b32 v{o+r}, v{36+2*slot+r}, v{H(slot)+r}, vcc\nv_cndmask_b32 v{o+2+r}, v{H(slot)+r}, v{36+2*slot+r}, vcc")
        k(f"buffer_store_dwordx4 {vr(o)}, v4, s[8:11], s39 offen offset:{1024*slot} {S1F}" if slot < 4 else f"buffer_store_dwordx4 {vr(o)}, v4, s[8:11], s37 offen {S1F}")

def role_J4(k, first):
    k(f"""s_sub_u32 s21, s98, {first}
s_lshl2_add_u32 s21, s21, s20
s_mul_hi_u32 s22, s21, {hex((1<<32)//3+1)}
s_mul_i32 s3, s22, 3
s_sub_u32 s23, s21, s3
s_mul_i32 s23, s23, 6
s_add_u32 s24, s23, 6
s_lshr_b32 s3, s22, 1
s_lshl_b32 s3, s3, 5
s_and_b32 s25, s22, 1
s_lshl2_add_u32 s3, s25, s3
s_cmp_ge_u32 s22, 18
s_cselect_b32 s25, 576, 0
s_sub_u32 s3, s3, s25
v_lshrrev_b32 v8, 2, v2
v_and_b32 v9, 3, v2
v_lshl_add_u32 v8, v8, 3, v9
v_add_u32 v8, s3, v8
v_cvt_f32_i32 v10, v8
v_mul_f32 v10, {fl(1/576)}, v10
v_lshlrev_b32 v9, 2, v3
v_cvt_f32_u32 v9, v9
v_and_b32 v11, 1, v2
v_lshlrev_b32 v11, 31, v11
v_xor_b32 v11, {fl(1/24)}, v11
v_mov_b32 v12, {fl(1/24)}
v_cvt_pk_bf16_f32 v11, v11, v12
s_mov_b32 s26, {fl(SC)}
s_and_b32 s27, s22, 15
s_mul_i32 s27, s27, 3
s_lshr_b32 s3, s22, 4
s_add_u32 s27, s27, s3
s_mul_i32 s27, s27, 18432
s_add_u32 s27, s27, {hex(GT)}
L_j4_loop:
s_lshl_b32 s3, s23, 4
v_cvt_f32_u32 v13, s3
v_add_f32 v13, v13, v9
v_cmp_eq_f32 vcc, 0, v13
v_mul_f32 v13, v13, v10
v_fract_f32 v13, v13""")
    for q in range(4):
        k(f"""v_fmamk_f32 v14, v10, {fl(float(q))}, v13
v_cos_f32 v15, v14
v_sin_f32 v16, v14
v_mul_f32 v15, s26, v15
v_mul_f32 v16, s26, v16
v_cvt_pk_bf16_f32 v{20+q}, v15, -v16""")
    k(f"""v_cndmask_b32 v20, v20, v11, vcc
s_lshl_b32 s3, s23, 10
s_add_u32 s3, s3, s27
buffer_store_dwordx4 v[20:23], v4, s[8:11], s3 offen {S1F}
s_add_u32 s23, s23, 1
s_cmp_lt_u32 s23, s24
s_cbranch_scc1 L_j4_loop""")


def role_PZ(k, first):
    k(f"""s_sub_u32 s21, s98, {first}
s_mul_i32 s22, s21, {15*4096}
s_add_u32 s22, s22, {hex(O1)}
s_mov_b32 s23, 15
v_mov_b32 v8, -1
v_mov_b32 v9, -1
v_mov_b32 v10, -1
v_mov_b32 v11, -1
v_lshlrev_b32 v7, 4, v0
L_pz_loop:
s_min_u32 s3, s22, {hex(O1 + BUF - 4096)}
buffer_store_dwordx4 v[8:11], v7, s[8:11], s3 offen {S1F}
s_add_u32 s22, s22, 4096
s_sub_u32 s23, s23, 1
s_cmp_lg_u32 s23, 0
s_cbranch_scc1 L_pz_loop""")
```

```python
import numpy as np
S, D, H, DH = 2048, 576, 32, 18
XH_SZ = 0x240000
import os
TAU_ST = int(os.environ.get('TAU_ST', 18432+256)); JP_ST = int(os.environ.get('JP_ST', 16384+256))
BUF = 0x250000
XH0 = 0; WQ = BUF; WT = 2*BUF; O1 = 3*BUF
XH1 = 4*BUF; KVP1 = 5*BUF; PZ1_END = KVP1 + 0x60000
XH2 = 0xC00000; XH3 = XH2 + BUF; O2 = XH2 + 2*BUF; X3T = XH2 + 3*BUF; KVP2 = XH2 + 4*BUF; SS2 = KVP2 + 0x60000; PZ2_END = SS2 + 0x8000
WOH = 0x1600000; WOT = 0x16C0000; GT = 0x1780000; FT = 0x1860000
SS0 = 0x18C0000; CNT = 0x18D0000
WS_END = 0x2000000
WQ_HP = 126*1024

def bf(x):
    x = np.ascontiguousarray(x, dtype=np.float32)
    u = x.view(np.uint32)
    r = ((u + 0x7FFF + ((u >> 16) & 1)) & 0xFFFF0000).astype(np.uint32)
    return r.view(np.float32)
def u16f(u):
    return (np.asarray(u).view(np.uint16).astype(np.uint32) << 16).view(np.float32)
def Fmat():
    d = np.arange(D)[:, None]; j = np.arange(288)[None, :]
    F = np.zeros((D, D))
    F[:, 0::2] = np.sqrt(2/D)*np.cos(2*np.pi*d*j/D); F[:, 1::2] = -np.sqrt(2/D)*np.sin(2*np.pi*d*j/D)
    F[:, 0] = (-1.0)**np.arange(D)/24; F[:, 1] = 1/24
    return F
def ts_of(t):
    return (t & 64) | ((t >> 4 & 1) << 5) | ((t >> 1 & 3) << 3) | ((t >> 3 & 1) << 2) | ((t & 1) << 1) | (t >> 5 & 1)
TS = ts_of(np.arange(128))
def untau(a):
    out = np.empty_like(a); out[TS] = a
    return out.reshape((2048,) + a.shape[2:])
def unfrag(buf16):
    a = np.asarray(buf16)[:128*TAU_ST//2].reshape(128, TAU_ST//2)[:, :9216].reshape(128, 18, 4, 16, 8)
    m = a.transpose(0, 3, 1, 2, 4).reshape(128, 16, 576).copy()
    m[:, :, 512:] = a[:, 16:].reshape(128, 16, 16, 4).transpose(0, 2, 1, 3).reshape(128, 16, 64)
    return untau(m)
def uny2(buf16):
    a = np.asarray(buf16)[:144*JP_ST//2].reshape(144, JP_ST//2)[:, :8192].reshape(144, 64, 16, 2, 4)
    return untau(a.transpose(1, 3, 2, 0, 4).reshape(128, 16, 576))
def tile_cols(T):
    i = np.arange(16)
    return 32*(T//2) + 8*(i//4) + 4*(T % 2) + i % 4
def eslot():
    E = np.zeros((18, 4, 8), dtype=int)
    for k in range(18):
        for g in range(4):
            for u in range(8):
                if k < 16: E[k, g, u] = 18*(2*k + u//4) + 4*g + u % 4
                else:
                    hp = 8*(k-16) + 2*g + u//4; r = u % 4
                    E[k, g, u] = 18*(2*hp + r//2) + 16 + r % 2
    return E
def wq_cols(hp):
    C = -np.ones((7, 16), dtype=int)
    for hl in range(2):
        h = 2*hp + hl
        C[hl] = 576 + 18*h + np.arange(16); C[2+hl] = 1152 + 18*h + np.arange(16); C[5+hl] = 18*h + np.arange(16)
        for x in range(2):
            C[4, 4*hl + x] = 1152 + 18*h + 16 + x
            C[4, 8 + 4*hl + x] = 576 + 18*h + 16 + x
            C[4, 10 + 4*hl + x] = 18*h + 16 + x
    return C
```

```python
from gen3b import *

def phi2(k, dst, acc, rs2, t, bcast=False):
    m = f"{vr(rs2,2)} op_sel_hi:[1,0]" if bcast else vr(rs2, 2)
    k(f"""v_pk_mul_f32 {vr(dst,2)}, {vr(acc,2)}, {m}
v_exp_f32_e64 v{t}, v{dst} clamp
v_exp_f32_e64 v{t+1}, v{dst+1} clamp
v_max_f32 v{dst}, s58, v{dst}
v_max_f32 v{dst+1}, s58, v{dst+1}
v_pk_fma_f32 {vr(dst,2)}, {vr(dst,2)}, s[56:57], {vr(t,2)}""")

def lds_rd(dst, o, va=('v4', 'v5')):
    return f"ds_read_b128 {dst}, {va[0]} offset:{o}" if o < 65536 else f"ds_read_b128 {dst}, {va[1]} offset:{o-65536}"

P3D = int(os.environ.get('P3D', 6))
GK0 = int(os.environ.get('GK0', 10))
PZK = (2, 4, 6, 8, 10, 12, 13, 14, 15, 16)
DA1 = int(os.environ.get('DA1', 10))
def phase_P3(k):
    A = lambda mt, kp: 16 + 8*kp + 4*mt
    AC = lambda t, mt: 160 + 8*t + 4*mt
    RS, RS2 = 208, 216
    TMP = 224; PKD = 232
    RL2 = 252
    FIN = L_FIN
    p3_map(k)
    k(f"""s_cmp_eq_u32 s45, 0
s_mov_b32 s40, {hex(XH1)}
s_mov_b32 s3, {hex(XH3)}
s_cselect_b32 s40, s40, s3
s_mov_b32 s41, {hex(O1)}
s_mov_b32 s3, {hex(O2)}
s_cselect_b32 s41, s41, s3
s_mov_b32 s42, {hex(KVP1)}
s_mov_b32 s3, {hex(KVP2)}
s_cselect_b32 s42, s42, s3
s_mul_i32 s25, s24, {2*TAU_ST}
s_lshl_b32 s31, s24, 8
s_add_u32 s26, s31, s40
s_add_u32 s27, s26, {JP_ST}
v_add_u32 v5, 0x10000, v4
v_mul_u32_u24 v6, {2*JP_ST}, v3
v_lshl_add_u32 v6, v2, 4, v6
v_cmp_eq_u32 vcc, 0, v3
v_mov_b32 v10, 0xffff
v_cndmask_b32 v10, -1, v10, vcc
s_mov_b32 s56, {fl(LN2)}
s_mov_b32 s57, {fl(LN2)}
s_mov_b32 s58, {fl(1e-6/LN2)}
""")
    k(f"""s_mov_b32 s16, s8
s_mov_b32 s17, s9
s_cmp_eq_u32 s45, 0
s_cselect_b32 s18, {hex(PZ2_END)}, 0
s_mov_b32 s19, 0x20000
s_lshl2_add_u32 s28, s2, s20
s_mul_i32 s28, s28, 10240
s_add_u32 s28, s28, {hex(XH2)}
v_mov_b32 v{PKD}, -1
v_mov_b32 v{PKD+1}, -1
v_mov_b32 v{PKD+2}, -1
v_mov_b32 v{PKD+3}, -1
s_cmp_lt_u32 s98, 144
s_cbranch_scc1 L_p3_gok
v_mov_b32 v9, 0
s_mov_b32 s34, 0
s_mov_b64 exec, 1
L_p3_gate:""")
    k.optional(True)
    k("buffer_load_dword v7, v9, s[8:11], s26 offen sc1\ns_waitcnt vmcnt(0)")
    k.optional(False)
    k(f"""v_cmp_eq_u32 vcc, -1, v7
s_add_u32 s34, s34, 1
s_cmp_gt_u32 s34, {SPIN}
s_cbranch_scc1 L_p3_gx
s_cbranch_vccnz L_p3_gate
L_p3_gx:
s_mov_b64 exec, -1
L_p3_gok:
s_mov_b32 s59, 0""")
    WB = lambda kp, t: ar(20*(kp % 2) + 4*t)
    wrd = lambda kp: [lds_rd(WB(kp, t), (4*kp + t)*1024) for t in range(4)] + [lds_rd(WB(kp, 4), L_LT + kp*1024)]
    stamp(k, 5)
    def loads(kp):
        if kp >= 18: return []
        return [f"buffer_load_dwordx4 {vr(A(0,kp))}, v6, s[8:11], s26 offen {S1F}\ns_add_u32 s26, s26, {8*JP_ST}",
                f"buffer_load_dwordx4 {vr(A(1,kp))}, v6, s[8:11], s27 offen {S1F}\ns_add_u32 s27, s27, {8*JP_ST}"]
    for kp in range(P3D): emit(k, loads(kp))
    k(f"s_waitcnt vmcnt({2*P3D})\ns_barrier")
    emit(k, wrd(0))
    def swp(kp):
        r = Rec(); scan(r, 8, range(A(0,kp), A(0,kp)+8))
        r(f"v_cmp_eq_u32 vcc, -1, v8"); r.l.append(f"s_cbranch_vccnz L_p3_f{kp}\nL_p3_o{kp}:")
        r(f"v_swap_b32 v{A(0,kp)+2}, v{A(0,kp)+4}\nv_swap_b32 v{A(0,kp)+3}, v{A(0,kp)+5}")
        return r.l
    def stubs(k):
        for kp in range(18):
            hi = min(18, kp + P3D)
            k(f"""L_p3_f{kp}:
s_add_u32 s59, s59, 1
s_cmp_gt_u32 s59, {SPIN}
s_cbranch_scc1 L_p3_o{kp}
s_sub_u32 s26, s26, {(hi-kp)*8*JP_ST}
s_sub_u32 s27, s27, {(hi-kp)*8*JP_ST}
s_waitcnt vmcnt(0)""")
            for q in range(kp, hi): emit(k, loads(q))
            k("s_waitcnt vmcnt(0)"); scan(k, 8, range(A(0,kp), A(0,kp)+8))
            k(f"v_cmp_eq_u32 vcc, -1, v8\ns_cbranch_vccnz L_p3_f{kp}\ns_branch L_p3_o{kp}")
    global p3_stubs
    p3_stubs = stubs
    emit(k, swp(0))
    for mt in range(2):
        b = TMP + 4*mt
        k(f"v_and_b32 v{b}, v10, v{A(mt,0)}\nv_mov_b32 v{b+1}, v{A(mt,0)+1}\nv_mov_b32 v{b+2}, v{A(mt,0)+2}\nv_mov_b32 v{b+3}, v{A(mt,0)+3}")
    k(f"v_lshlrev_b32 v9, 8, v2\ns_mov_b32 s36, {hex(C_J)}")
    for kp in range(18):
        m = []
        for t in range(5):
            for mt in range(2):
                m.append(f"{MF} {vr(AC(t,mt))}, {vr(A(mt,kp))}, {WB(kp,t)}, {'0' if kp == 0 else vr(AC(t,mt))}")
        for mt in range(2):
            x = vr(A(mt, kp)) if kp else vr(TMP + 4*mt)
            m.append(f"{MF} {vr(AC(5,mt))}, {x}, {x}, {'0' if kp == 0 else vr(AC(5,mt))}")
        side = wrd(kp+1) if kp + 1 < 18 else []
        ld = loads(kp + P3D)
        if kp % 2 == 1: ld = ld + kv_dma(0, 1)
        if kp in PZK: ld = ld + [f"buffer_store_dwordx4 {vr(PKD)}, v4, s[16:19], s28 offen sc1\ns_add_u32 s28, s28, 1024"]
        if kp == 11: ld = ld + [f"buffer_load_dword v7, v9, s[8:11], s36 offen {S1F}"]
        side = merge(side, ld) if side else ld
        sw = swp(kp+1) if kp + 1 < 18 else []
        emit(k, merge(m[:8], side) + merge(m[8:], sw, ratio=3))
    stamp(k, 6)
    count(k, 2, 59)
    k("""v_and_b32 v13, 3, v2
v_cmp_eq_u32 s[46:47], 1, v13
v_cmp_eq_u32 s[48:49], 2, v13
v_cmp_eq_u32 s[50:51], 3, v13
v_lshrrev_b32 v12, 2, v2
v_cmp_eq_u32 s[52:53], v12, v3
v_mov_b32 v11, 1.0""")
    k(f"s_mov_b32 s32, {fl(1/576)}\nv_mov_b32 v12, {fl(1e-5)}\nv_mov_b32 v13, {fl(LOG2E)}")
    for mt in range(2):
        g = AC(5, mt)
        k(f"""v_cndmask_b32 v{14+mt}, v{g}, v{g+1}, s[46:47]
v_cndmask_b32 v{14+mt}, v{14+mt}, v{g+2}, s[48:49]
v_cndmask_b32 v{14+mt}, v{14+mt}, v{g+3}, s[50:51]
v_fma_f32 v{14+mt}, v{14+mt}, s32, v12
v_rsq_f32 v{14+mt}, v{14+mt}
v_cndmask_b32 v{14+mt}, 0, v{14+mt}, s[52:53]""")
    for mt in range(2): k(f"v_mfma_f32_16x16x4_f32 {vr(RS+4*mt)}, v{14+mt}, v11, 0")
    for mt in range(2): k(f"v_mfma_f32_16x16x4_f32 {vr(RS2+4*mt)}, v{14+mt}, v13, 0")
    for mt in range(2): k(f"v_mfma_f32_16x16x4_f32 {vr(TMP+4*mt)}, v13, v{14+mt}, 0")
    k(f"""v_cmp_lt_u32 s[46:47], 7, v2
v_cmp_gt_u32 s[48:49], 4, v2
v_and_b32 v13, 10, v2
v_cmp_eq_u32 s[50:51], 2, v13
v_cmp_eq_u32 s[52:53], 2, v3
v_cmp_eq_u32 s[54:55], 3, v3
s_mov_b32 s34, 0
L_p3_jchk:
v_cmp_gt_u32 vcc, 7, v7
s_cbranch_vccz L_p3_jok
s_add_u32 s34, s34, 1
s_cmp_gt_u32 s34, {SPIN}
s_cbranch_scc1 L_p3_jok""")
    k.optional(True)
    k(f"buffer_load_dword v7, v9, s[8:11], s36 offen {S1F}\ns_waitcnt vmcnt(0)")
    k.optional(False)
    k(f"""s_branch L_p3_jchk
L_p3_jok:
s_lshr_b32 s3, s2, 5
s_mul_i32 s61, s3, {90*1024}
s_lshl_b32 s3, s20, 10
s_add_u32 s61, s61, s3
s_mov_b32 m0, s3
s_mul_i32 s62, s23, {54*1024}
s_add_u32 s62, s62, s3
s_add_u32 s62, s62, {hex(GT)}
s_add_u32 s63, s3, {L_Q}
s_cmp_eq_u32 s45, 0
s_mov_b32 s3, {hex(WOT)}
s_cselect_b32 s3, {hex(WOH)}, s3
s_cselect_b32 s18, 0, s10
s_add_u32 s61, s61, s3""")
    da = [f"buffer_load_dwordx4 v4, s[8:11], s61 offen sc1 lds\ns_add_u32 s61, s61, 4096\ns_add_u32 m0, m0, 4096" for m in range(23)]
    for mt in range(2): k(f"v_mov_b32 v{RL2+2*mt}, v{TMP+4*mt}")
    for t in (2, 0, 4, 3, 1):
        for q in range(4):
            a = AC(t, 0) + 2*q
            if t < 2: phi2(k, a, a, RS2+2*q, TMP + 2*(q % 2))
            elif t < 4: k(f"v_pk_mul_f32 {vr(a,2)}, {vr(a,2)}, {vr(RS+2*q,2)}")
            else:
                phi2(k, TMP+4, a, RS2+2*q, TMP + 2*(q % 2))
                k(f"v_pk_mul_f32 {vr(a,2)}, {vr(a,2)}, {vr(RS+2*q,2)}")
                for h in range(2):
                    k(f"v_cndmask_b32 v{a+h}, v{a+h}, v{TMP+4+h}, s[46:47]\nv_cndmask_b32 v{a+h}, v{a+h}, 1.0, s[50:51]")
            k(f"v_cvt_pk_bf16_f32 v{PKD+4*t+q}, v{a}, v{a+1}")
    P = lambda t: vr(PKD+4*t)
    T00, T11, T0L, T1L, TL0, TL1, TLL = [160 + 4*i for i in range(7)]
    for d, a, b in ((T00,0,2), (T0L,0,4), (TL0,4,2), (TLL,4,4), (TL1,4,3), (T1L,1,4), (T11,1,3)):
        k(f"{MF} {vr(d)}, {P(a)}, {P(b)}, 0")
    k(f"""s_lshl_b32 s3, s20, 12
s_add_u32 s3, s3, {L_RED}
v_add_u32 v7, s3, v4
s_lshl_b32 s3, s20, 10
v_add_u32 v14, s3, v4
v_lshrrev_b32 v15, 3, v1
v_and_b32 v13, 7, v1
v_lshl_add_u32 v15, v15, 4, v13
v_lshlrev_b32 v15, 4, v15
v_add_u32 v15, 0x800, v15
v_add_u32 v13, 0xc00, v4
v_cmp_gt_u32 vcc, 32, v1
v_cndmask_b32 v15, v13, v15, vcc
s_cmp_eq_u32 s20, 2
s_cselect_b64 vcc, -1, 0
v_cndmask_b32 v14, v14, v15, vcc
v_add_u32 v14, {L_RED}, v14
ds_write_b128 v7, {vr(T00)}
v_cndmask_b32 v{TL0}, v{TL1}, v{TL0}, s[52:53]
v_cndmask_b32 v{TL0+1}, v{TL1+1}, v{TL0+1}, s[52:53]
v_mov_b32 v{TL0+2}, v{TLL}
v_mov_b32 v{TL0+3}, v{TLL+1}
ds_write_b128 v7, {vr(TL0)} offset:3072""")
    for r in range(4): k(f"v_cndmask_b32 v{T0L+r}, v{T1L+r}, v{T0L+r}, s[48:49]")
    k(f"""ds_write_b128 v7, {vr(T0L)} offset:2048
ds_write_b128 v7, {vr(T11)} offset:1024
s_min_u32 s3, s20, 2
s_mul_i32 s29, s23, 3
s_add_u32 s29, s29, s3
s_lshl_b32 s29, s29, 13
s_add_u32 s29, s29, s42
s_lshl_b32 s3, s22, 9
s_add_u32 s30, s29, s3
s_add_u32 s35, s29, 4096
v_lshrrev_b32 v15, 1, v3
v_lshl_add_u32 v15, v15, 4, v2
v_and_b32 v13, 1, v3
v_lshlrev_b32 v13, 3, v13
v_lshl_add_u32 v15, v15, 4, v13
s_waitcnt vmcnt(0) lgkmcnt(0)
s_barrier
s_cmp_eq_u32 s20, 3
s_cbranch_scc1 L_p3_nopub""")
    k.optional(True)
    for c_ in range(4): k(f"ds_read_b128 {vr(184+4*c_)}, v14 offset:{4096*c_}")
    for r in range(0, 4, 2):
        k(f"v_pk_add_f32 {vr(184+r,2)}, {vr(184+r,2)}, {vr(188+r,2)}\nv_pk_add_f32 {vr(192+r,2)}, {vr(192+r,2)}, {vr(196+r,2)}\nv_pk_add_f32 {vr(184+r,2)}, {vr(184+r,2)}, {vr(192+r,2)}")
    k(f"v_cvt_pk_bf16_f32 v184, v184, v185\nv_cvt_pk_bf16_f32 v185, v186, v187\nbuffer_store_dwordx2 v[184:185], v15, s[8:11], s30 offen sc1")
    k.optional(False)
    k("L_p3_nopub:")
    stamp(k, 7)
    QW = lambda kp, t: ar(8*(kp % 4) + 4*t)
    qrd = lambda kp: [lds_rd(QW(kp, t), L_Q + 2048*kp + 1024*t) for t in range(2)]
    GD = lambda c_: 188 + 4*c_
    gl = [f"buffer_load_dwordx4 {vr(GD(c_))}, v4, s[8:11], s{(29,35)[c_//4]} offen offset:{1024*(c_%4)} sc1" for c_ in range(8)]
    SEL = 220; GS = 224; BQ = lambda mt: 232 + 6*mt
    emit(k, qrd(0)); emit(k, qrd(1)); emit(k, qrd(2))
    sv = Rec()
    sv(f"""v_and_b32 v13, 1, v2
v_lshlrev_b32 v13, 4, v13
v_mov_b32 v12, 0x3f80
v_lshlrev_b32 v13, v13, v12
v_lshrrev_b32 v12, 1, v2
v_lshlrev_b32 v15, 1, v3
v_cmp_eq_u32 vcc, v12, v15
v_cndmask_b32 v178, 0, v13, vcc
v_add_u32 v15, 1, v15
v_cmp_eq_u32 vcc, v12, v15
v_cndmask_b32 v179, 0, v13, vcc
v_mov_b32 v176, 0
v_mov_b32 v177, 0
v_mov_b32 v180, 0
v_mov_b32 v181, 0
{MF} v[224:227], {P(4)}, v[178:181], 0
{MF} v[228:231], {P(4)}, v[176:179], 0
v_and_b32 v15, 1, v3
v_lshlrev_b32 v15, 2, v15""")
    for q in range(4): sv(f"v_cmp_eq_u32 vcc, v12, v15\nv_cndmask_b32 v{SEL+q}, 0, v13, vcc\nv_add_u32 v15, 1, v15")
    for mt in range(2): sv(f"v_cvt_pk_bf16_f32 v{BQ(mt)+2}, v{226+4*mt}, v{227+4*mt}\nv_mov_b32 v{BQ(mt)+3}, 0")
    body = []
    for kp in range(18):
        m = [f"{MF} {vr(AC(t,mt))}, {QW(kp,t)}, {vr(A(mt,kp))}, {'0' if kp == 0 else vr(AC(t,mt))}" for t in range(2) for mt in range(2)]
        side = qrd(kp+3) if kp + 3 < 18 else []
        vm = da[kp:kp+1] if kp < DA1 else []
        if kp >= GK0: vm = vm + gl[(kp-GK0)*8//(18-GK0):(kp+1-GK0)*8//(18-GK0)]
        body += merge(m, merge(side, vm) if side else vm)
    h = len(body)//2
    emit(k, merge(body[:h], sv.l) + body[h:])
    k("s_barrier\ns_mov_b32 s43, m0\ns_mov_b32 m0, s63")
    stamp(k, 8)
    dg = [f"buffer_load_dwordx4 v4, s[16:19], s62 offen sc1 lds\ns_add_u32 s62, s62, 4096\ns_add_u32 m0, m0, 4096" for m in range(14)]
    qe = Rec()
    for mt in range(2):
        for t in range(2):
            for q in range(2):
                a = AC(t, mt) + 2*q
                phi2(qe, a, a, RL2+2*mt, 228 + 2*q, bcast=True)
                qe(f"v_cvt_pk_bf16_f32 v{BQ(mt) + 4*t + q}, v{a}, v{a+1}")
    emit(k, merge(qe.l, dg[:5]))
    k("s_mov_b32 s34, 0\ns_waitcnt vmcnt(5)\ns_branch L_p3_check\nL_p3_poll:")
    emit(k, gl)
    k(f"s_waitcnt vmcnt(0)\nL_p3_check:")
    for c_ in range(8): k(f"{MF} {vr(GS)}, {vr(SEL)}, {vr(GD(c_))}, {'0' if c_ == 0 else vr(GS)}")
    k(f"""s_add_u32 s34, s34, 1
v_cmp_u_f32 vcc, v{GS}, v{GS}
s_cmp_gt_u32 s34, {SPIN}
s_cbranch_scc1 L_p3_polled
s_cbranch_vccnz L_p3_poll
L_p3_polled:""")
    count(k, 3, 34)
    AL0, AL1, BE0, BE1 = 188, 192, 196, 200
    k(f"""v_cvt_pk_bf16_f32 v228, v{GS}, v{GS+1}
v_cvt_pk_bf16_f32 v229, v{GS+2}, v{GS+3}
s_lshl_b32 s3, s20, 9
s_add_u32 s3, s3, {FIN}
v_lshl_add_u32 v13, v1, 3, s3
ds_write_b64 v13, v[228:229]""")
    stamp(k, 9)
    fa = Rec()
    fa(f"""v_lshlrev_b32 v13, 3, v1
v_add_u32 v13, {FIN}, v13
v_and_b32 v14, 3, v2
v_lshl_add_u32 v15, v3, 4, v14
v_lshl_add_u32 v14, v3, 3, v14
v_lshlrev_b32 v14, 3, v14
v_add_u32 v14, {FIN}, v14
v_lshlrev_b32 v15, 3, v15
v_add_u32 v15, {FIN}, v15
v_mov_b32 v{AL0+3}, 0
v_mov_b32 v{AL1+1}, 0
v_mov_b32 v{BE0+3}, 0
v_mov_b32 v{BE1+1}, 0
s_lshl_b32 s3, s23, 10
s_add_u32 s36, s25, s41
s_add_u32 s34, s36, s3
s_lshl_b32 s3, s23, 7
s_add_u32 s36, s36, s3
s_add_u32 s36, s36, 16384
s_add_u32 s35, s34, {TAU_ST}
v_mul_u32_u24 v11, {TAU_ST}, v3
v_lshl_add_u32 v11, v2, 3, v11
v_cmp_eq_u32 s[46:47], 0, v3
v_mov_b32 v12, {fl(1e-6)}""")
    emit(k, merge(fa.l, dg[5:7]))
    k(f"""s_waitcnt lgkmcnt(0)
s_barrier
ds_read_b32 v9, v15 offset:1028
ds_read_b32 v10, v15 offset:1060
ds_read_b64 v[{BE0}:{BE0+1}], v14 offset:1024
ds_read_b64 v[{BE1+2}:{BE1+3}], v14 offset:1056
ds_read_b32 v8, v13 offset:1024
ds_read_b64 v[{AL0}:{AL0+1}], v13
ds_read_b64 v[{AL1+2}:{AL1+3}], v13 offset:512""")
    emit(k, dg[7:8])
    k(f"""v_cndmask_b32 v{BE0+2}, 0, v9, s[52:53]
v_cndmask_b32 v{BE1}, 0, v10, s[54:55]
v_cndmask_b32 v{AL0+2}, 0, v8, s[52:53]
v_cndmask_b32 v{AL1}, 0, v8, s[54:55]""")
    D = lambda mt, x: (160, 204)[mt] + 4*x
    for mt in range(2):
        b0, b1 = vr(BQ(mt)), vr(BQ(mt)+2)
        k(f"{MF} {vr(D(mt,2))}, {vr(BE0)}, {b0}, 0\n{MF} {vr(D(mt,3))}, {vr(BE1)}, {b1}, 0")
    for mt in range(2):
        b0, b1 = vr(BQ(mt)), vr(BQ(mt)+2)
        k(f"{MF} {vr(D(mt,0))}, {vr(AL0)}, {b0}, 0\n{MF} {vr(D(mt,1))}, {vr(AL1)}, {b1}, 0")
    emit(k, dg[8:9])
    for mt in range(2):
        for h in range(2):
            rd = D(mt, 2+h) + 3
            k(f"v_add_f32 v{rd}, v{rd}, v12\nv_rcp_f32 v{rd}, v{rd}")
    for mt in range(2):
        O = 176 + 6*mt
        for h in range(2):
            rd = D(mt, 2+h) + 3
            for r in range(4): k(f"v_mul_f32 v{D(mt,h)+r}, v{D(mt,h)+r}, v{rd}")
            k(f"v_cvt_pk_bf16_f32 v{O+2*h}, v{D(mt,h)}, v{D(mt,h)+1}\nv_cvt_pk_bf16_f32 v{O+2*h+1}, v{D(mt,h)+2}, v{D(mt,h)+3}")
        for r in range(4): k(f"v_min_u32 v{O+r}, -2, v{O+r}")
        k(f"buffer_store_dwordx4 {vr(O)}, v4, s[8:11], s{34+mt} offen sc1")
    for mt in range(2):
        O = 176 + 6*mt
        for h in range(2):
            rd = D(mt, 2+h) + 3
            for r in range(2): k(f"v_mul_f32 v{D(mt,2+h)+r}, v{D(mt,2+h)+r}, v{rd}")
            k(f"v_cvt_pk_bf16_f32 v{O+4+h}, v{D(mt,2+h)}, v{D(mt,2+h)+1}")
    k(f"""v_cndmask_b32 v180, v186, v180, s[46:47]
v_cndmask_b32 v181, v187, v181, s[46:47]
v_min_u32 v180, -2, v180
v_min_u32 v181, -2, v181
s_mov_b32 exec_hi, 0
buffer_store_dwordx2 v[180:181], v11, s[8:11], s36 offen sc1
s_mov_b32 exec_hi, -1""")
    stamp(k, 10)
    def rest_da(tag):
        return da[DA1:22] + [f"s_cmp_ge_u32 s20, 2\ns_cbranch_scc1 L_{tag}\n{da[22]}\nL_{tag}:"]
    k("s_cmp_lg_u32 s45, 0\ns_cbranch_scc1 L_p3_g\ns_mov_b32 m0, s43")
    k.optional(True); emit(k, rest_da('p3r0')); k.optional(False)
    k(f"""s_branch L_p3_nog
L_p3_g:
s_cmp_ge_u32 s23, 4
s_cbranch_scc1 L_p3_g2""")
    k.optional(True); emit(k, dg[9:14]); k("s_waitcnt vmcnt(8)"); k.optional(False)
    k(f"""s_branch L_p3_g3
L_p3_g2:
s_waitcnt vmcnt(3)
L_p3_g3:
s_barrier
s_mov_b32 m0, s43
s_mov_b32 s38, s23
v_add_u32 v14, {L_Q}, v4""")
    GW = lambda kp: ar(4*(kp % 6))
    def gtile(extra):
        r = [f"ds_read_b128 {GW(kp)}, v14 offset:{1024*kp}" for kp in range(5)]
        b_ = []
        for kp in range(18):
            for mt in range(2):
                b_.append(f"{MF} {vr(160+4*mt)}, {GW(kp)}, {vr(A(mt,kp))}, {'0' if kp == 0 else vr(160+4*mt)}")
                if mt == 0 and kp + 5 < 18: b_.append(f"ds_read_b128 {GW(kp+5)}, v14 offset:{1024*(kp+5)}")
        r += merge(b_, extra)
        r.append(f"""s_lshr_b32 s39, s38, 1
s_lshl_b32 s39, s39, 3
s_and_b32 s3, s38, 1
s_add_u32 s39, s39, s3
s_mul_i32 s39, s39, {JP_ST}
s_add_u32 s39, s39, s31
s_add_u32 s39, s39, {hex(X3T)}
v_add_u32 v14, {18*1024}, v14
s_add_u32 s38, s38, 16""")
        for q in range(4): r.append(f"v_cvt_pk_bf16_f32 v{168+q}, v{160+2*q}, v{161+2*q}\nv_min_u32 v{168+q}, -2, v{168+q}")
        r.append("buffer_store_dwordx4 v[168:171], v6, s[8:11], s39 offen sc1")
        return r
    k.optional(True)
    rd_ = rest_da('p3r1'); h = len(rd_)//2
    emit(k, gtile(rd_[:h])); emit(k, gtile(rd_[h:]))
    k(f"s_cmp_ge_u32 s23, 4\ns_cbranch_scc1 L_p3_nog\ns_waitcnt vmcnt({len(rd_)+1})\ns_barrier")
    emit(k, gtile([]))
    k.optional(False)
    k("L_p3_nog:")

P4D = int(os.environ.get('P4D', 8))
def phase_P4(k):
    rbcb(k)
    k(f"""s_cmp_eq_u32 s45, 0
s_mov_b32 s40, {hex(O1)}
s_mov_b32 s3, {hex(O2)}
s_cselect_b32 s40, s40, s3
s_mov_b32 s41, {hex(XH1)}
s_mov_b32 s3, {hex(X3T)}
s_cselect_b32 s41, s41, s3
s_mul_i32 s28, s25, {TAU_ST}
s_add_u32 s28, s28, s40
v_add_u32 v5, 0x10000, v4
v_lshlrev_b32 v10, 8, v3
v_lshl_add_u32 v10, v2, 3, v10
v_mul_u32_u24 v6, {2*JP_ST}, v3
v_lshl_add_u32 v6, v2, 4, v6
s_lshr_b32 s30, s25, 1
s_lshl_b32 s30, s30, 8
s_and_b32 s3, s25, 1
s_lshl3_add_u32 s30, s3, s30
s_add_u32 s30, s30, s41
s_mul_i32 s31, s24, {16*JP_ST}
s_add_u32 s31, s31, s30
s_lshr_b32 s3, s27, 1
s_lshl_b32 s3, s3, 3
s_and_b32 s32, s27, 1
s_add_u32 s3, s3, s32
s_mul_i32 s3, s3, {JP_ST}
s_add_u32 s30, s30, s3
s_add_u32 s29, s28, 4096
s_add_u32 s33, s28, 8192
s_add_u32 s35, s28, 12288
s_add_u32 s36, s28, 16384
s_mov_b32 s59, 0""")
    stamp(k, 11)
    RES = 108
    def loads(kp):
        if kp in (16, 17):
            return [f"buffer_load_dwordx2 {vr(XB+4*kp+2*h,2)}, v10, s[8:11], s36 offen offset:{(kp-16)*1024 + 128*h} sc1" for h in range(2)]
        if kp < 18:
            return [f"buffer_load_dwordx4 {vr(XB+4*kp)}, v4, s[8:11], s{(28,29,33,35)[kp//4]} offen offset:{(kp % 4)*1024} sc1"]
        slot = kp - 18
        if slot < 4: return [f"s_add_u32 s3, s31, {(8*(slot//2) + slot % 2)*JP_ST}\nbuffer_load_dwordx2 {vr(RES+2*slot,2)}, v6, s[8:11], s3 offen sc1"]
        if slot == 4: return [f"buffer_load_dwordx2 {vr(RES+8,2)}, v6, s[8:11], s30 offen sc1"]
        return []
    WB = lambda kp, t: ar(20*(kp % 2) + 4*t)
    wrd = lambda kp: [lds_rd(WB(kp, t), (4*kp + t)*1024) for t in range(4)] + [lds_rd(WB(kp,4), L_LT + kp*1024)]
    for kp in range(P4D): emit(k, loads(kp))
    k(f"s_waitcnt vmcnt({P4D})\ns_barrier")
    emit(k, wrd(0))
    def chk(kp):
        r = Rec(); r(f"L_p4_c{kp}:"); scan(r, 11, range(XB+4*kp, XB+4*kp+8))
        r(f"v_cmp_eq_u32 vcc, -1, v11\ns_cbranch_vccnz L_p4_f{kp}\nL_p4_o{kp}:")
        return r.l
    emit(k, chk(0))
    for kp in range(18):
        m = [f"{MF} {vr(ACC+4*t)}, {WB(kp,t)}, {vr(XB+4*kp)}, {'0' if kp == 0 else vr(ACC+4*t)}" for t in range(5)]
        side = wrd(kp+1) if kp + 1 < 18 else []
        ld = loads(kp + P4D)
        seq = merge(m, merge(side, ld) if side else ld)
        if kp % 2 == 1 and kp + 1 < 18: seq = seq + chk(kp+1)
        emit(k, seq)
    for kp in range(18 + P4D, 23): emit(k, loads(kp))
    stamp(k, 12)
    count(k, 4, 59)
    k(f"s_mov_b32 s34, 0\nL_p4_rchk:")
    scan(k, 11, range(RES, RES+10))
    k(f"v_cmp_eq_u32 vcc, -1, v11\ns_cbranch_vccnz L_p4_rre\nL_p4_rok:")
    k(f"""s_cmp_eq_u32 s24, 0
s_cselect_b32 s3, 0, 1.0
v_mov_b32 v9, s3
v_cmp_eq_u32 vcc, 0, v3
v_cndmask_b32 v9, 1.0, v9, vcc""")
    PKR = lambda s_: RES + 2*s_
    for slot in range(5):
        a = ACC + 4*slot; E = 120
        for q in range(2):
            k(f"v_lshlrev_b32 v{E+2*q}, 16, v{RES+2*slot+q}\nv_and_b32 v{E+2*q+1}, 0xffff0000, v{RES+2*slot+q}")
        for r in range(0, 4, 2): k(f"v_pk_add_f32 {vr(a+r,2)}, {vr(a+r,2)}, {vr(E+r,2)}")
        k(f"v_cvt_pk_bf16_f32 v{PKR(slot)}, v{a}, v{a+1}\nv_cvt_pk_bf16_f32 v{PKR(slot)+1}, v{a+2}, v{a+3}")
    k("s_cmp_lg_u32 s45, 0\ns_cbranch_scc1 L_p4_final")
    for r in range(10): k(f"v_min_u32 v{RES+r}, -2, v{RES+r}")
    sumsq(k, 'p4', lambda s_: ACC+4*s_, 9)
    k(f"s_mov_b32 s44, {hex(XH2)}")
    y2_exchange_store(k, 'p4', 44, SS2, L_EX, S1F, PKR, 8, san=True)
    prof_dump(k)
    if PROF: prof_init(k, 3)
    k("s_mov_b32 s45, 1\ns_branch L_kp_layer\nL_p4_final:")
    srd(k, 12, 6, 7, XH_SZ)
    tau_to_ts(k, 25, 26)
    k(f"""s_mul_i32 s26, s26, 18432
v_mul_u32_u24 v7, 1152, v2
v_lshl_add_u32 v7, v3, 4, v7
s_lshl_b32 s3, s24, 7
s_add_u32 s39, s26, s3
buffer_store_dwordx4 {vr(RES)}, v7, s[12:15], s39 offen
buffer_store_dwordx4 {vr(RES+4)}, v7, s[12:15], s39 offen offset:64
s_cmp_eq_u32 s21, 0
s_cbranch_scc1 L_p4_end
s_lshr_b32 s3, s27, 1
s_lshl_b32 s3, s3, 6
s_add_u32 s26, s26, s3
s_and_b32 s3, s27, 1
s_lshl3_add_u32 s26, s3, s26
buffer_store_dwordx2 {vr(RES+8,2)}, v7, s[12:15], s26 offen
L_p4_end:""")
    endpgm(k)
    for kp in range(0, 18, 2):
        k(f"L_p4_f{kp}:\ns_add_u32 s59, s59, 1\ns_cmp_gt_u32 s59, {SPIN}\ns_cbranch_scc1 L_p4_o{kp}\ns_waitcnt vmcnt(0)")
        for q in range(kp, min(18, kp + P4D)): emit(k, loads(q))
        k(f"s_waitcnt vmcnt(0)\ns_branch L_p4_c{kp}")
    k(f"L_p4_rre:\ns_add_u32 s34, s34, 1\ns_cmp_gt_u32 s34, {SPIN}\ns_cbranch_scc1 L_p4_rok")
    for kp in range(18, 23): emit(k, loads(kp))
    k("s_waitcnt vmcnt(0)\ns_branch L_p4_rchk")
    p3_stubs(k)

def kernelP():
    k = Kern("kp_kernel")
    prof_init(k, 2)
    k("""s_cmp_ge_u32 s2, 256
s_cbranch_scc1 L_kp_exit
s_load_dwordx2 s[4:5], s[0:1], 64
s_load_dwordx2 s[6:7], s[0:1], 48
s_load_dwordx2 s[52:53], s[0:1], 40""")
    lane_setup(k)
    p3_map(k)
    k(f"""s_mul_i32 s60, s23, {WQ_HP}
s_lshl_b32 s3, s20, 10
s_add_u32 s60, s60, s3
s_add_u32 s60, s60, {hex(WQ)}
s_mov_b32 s45, 0
s_bfe_u32 s98, s2, 0x20003
s_lshl_b32 s98, s98, 6
s_lshr_b32 s3, s2, 5
s_lshl3_add_u32 s98, s3, s98
s_and_b32 s3, s2, 7
s_add_u32 s98, s98, s3""")
    k("""s_cmp_ge_u32 s98, 144
s_cbranch_scc1 L_kp_side
L_kp_layer:
s_cmp_ge_u32 s98, 144
s_cbranch_scc1 L_kp_pref""")
    save = phase_P2(k)
    k("s_cmp_lg_u32 s45, 0\ns_cbranch_scc1 L_kp_kv1")
    emit(k, merge(kv_dma(KV0, KVE), save))
    k("L_kp_kv1:")
    emit(k, kv_dma(KVE, 22)); kv_last(k, 'p2')
    k("L_kp_p3:")
    stamp(k, 4)
    phase_P3(k)
    phase_P4(k)
    k("L_kp_side:\ns_waitcnt lgkmcnt(0)")
    srd(k, 8, 4, 5, WS_END)
    k("""s_cmp_ge_u32 s98, 243
s_cbranch_scc1 L_kp_pz
s_cmp_ge_u32 s98, 216
s_cbranch_scc1 L_kp_j4""")
    role_J2(k, 144)
    k(f"s_and_b32 s3, s98, 15\ns_lshl_b32 s36, s3, 8\ns_add_u32 s36, s36, {hex(C_J)}")
    arrive(k, 'j2', 36)
    k("s_branch L_kp_p3\nL_kp_j4:")
    role_J4(k, 216)
    k("L_kp_pz:")
    role_PZ(k, 216)
    k(f"s_and_b32 s3, s98, 15\ns_lshl_b32 s36, s3, 8\ns_add_u32 s36, s36, {hex(C_J)}")
    arrive(k, 'js', 36)
    k("L_kp_pref:")
    kv_dma_start(k)
    emit(k, kv_dma(0, 22)); kv_last(k, 'pf')
    k("s_branch L_kp_p3\nL_kp_exit:\ns_endpgm\nL_code_end:")
    return k

if __name__ == "__main__":
    write_module(sys.argv[1], [("k1_kernel", 256, 512, 157*1024), ("kp_kernel", 256, 256, 160*1024)], [kernel1(), kernelP()])
```

```python
import re

REG_RE = re.compile(r'^(-|\|)?(abs\()?([vas])(\d+|\[(\d+):(\d+)\])\)?\|?$')
TRANS = ('v_exp_f32', 'v_log_f32', 'v_rcp_f32', 'v_rsq_f32', 'v_sqrt_f32', 'v_sin_f32', 'v_cos_f32', 'v_rcp_iflag_f32')
SALU_NODST = ('s_cmp', 's_waitcnt', 's_barrier', 's_nop', 's_branch', 's_cbranch', 's_endpgm', 's_sleep', 's_setprio', 's_bitcmp')

def regs_of(tok):
    tok = tok.strip()
    if tok in ('vcc',): return {('s', 106), ('s', 107)}
    if tok == 'vcc_lo': return {('s', 106)}
    if tok == 'vcc_hi': return {('s', 107)}
    if tok == 'exec': return {('s', 126), ('s', 127)}
    if tok == 'exec_lo': return {('s', 126)}
    if tok == 'exec_hi': return {('s', 127)}
    if tok == 'm0': return {('s', 124)}
    m = REG_RE.match(tok)
    if not m: return set()
    kind = m.group(3)
    if m.group(5) is not None:
        lo, hi = int(m.group(5)), int(m.group(6))
    else:
        lo = hi = int(m.group(4))
    return {(kind, i) for i in range(lo, hi + 1)}

def split_ops(s):
    out, depth, cur = [], 0, ''
    for ch in s:
        if ch in '[(': depth += 1
        if ch in '])': depth -= 1
        if ch == ',' and depth == 0:
            out.append(cur.strip()); cur = ''
        else: cur += ch
    if cur.strip(): out.append(cur.strip())
    return out

class Ins:
    __slots__ = ('text', 'mn', 'ops', 'flags', 'rd', 'wr', 'cls', 'passes', 'srcc', 'srcab', 'label', 'target', 'opt', 'dpp', 'wide_store_data', 'states', 'tag', 'solo')
    def __init__(self, text, opt=False):
        self.text = text; self.opt = opt; self.tag = None; self.solo = None
        if '@tag=' in text:
            text, self.tag = text.split('@tag='); self.tag = self.tag.strip(); text = text.strip(); self.text = text
        if text.startswith('WAITVM'):
            self.cls = 'waitvm'; self.tag = text.split()[1]; self.mn = ''; self.ops = []; self.flags = ''; self.label = None; self.target = None; self.rd = set(); self.wr = set(); self.states = 0; return
        self.label = None; self.target = None
        self.rd = set(); self.wr = set(); self.cls = 'other'; self.passes = 0
        self.srcc = set(); self.srcab = set(); self.dpp = False; self.wide_store_data = set(); self.states = 1
        t = text.split(';')[0].strip()
        if t.endswith(':'):
            self.label = t[:-1]; self.cls = 'label'; self.mn = ''; self.ops = []; self.flags = ''; self.states = 0; return
        if not t or t.startswith('.'):
            self.cls = 'dir'; self.mn = ''; self.ops = []; self.flags = ''; self.states = 0; return
        p = t.split(None, 1); mn = p[0]; rest = p[1] if len(p) > 1 else ''
        self.mn = mn
        ops = split_ops(rest)
        flags = ''
        if ops:
            last = ops[-1].split(None, 1)
            if len(last) > 1 and not mn.startswith('s_waitcnt'):
                ops[-1] = last[0]; flags = last[1]
        self.ops = ops; self.flags = flags
        R = [regs_of(o) for o in ops]
        U = lambda l: set().union(*l) if l else set()
        fl = flags.split()
        if mn.startswith('v_mfma'):
            self.cls = 'mfma'; self.wr = R[0]; self.rd = U(R[1:]); self.srcab = R[1] | R[2]; self.srcc = R[3]
            if '16x16x32' in mn or '16x16x16' in mn: self.passes = 4
            elif '32x32x16' in mn or '32x32x8' in mn or '16x16x4_f32' in mn: self.passes = 8
            else: raise ValueError('unknown mfma ' + mn)
        elif mn.startswith('v_'):
            self.cls = 'valu'
            self.dpp = ('_dpp' in mn) or any(f.startswith(('row_', 'quad_perm', 'wave_')) for f in fl)
            if mn.startswith('v_cmpx'): raise ValueError('no cmpx')
            if mn.startswith(('v_add_co', 'v_sub_co', 'v_subrev_co', 'v_addc_co', 'v_subb_co', 'v_subbrev_co', 'v_mad_u64_u32', 'v_div_scale')):
                self.wr = R[0] | R[1]; self.rd = U(R[2:])
            elif mn.startswith(('v_permlane16_swap', 'v_permlane32_swap', 'v_swap')):
                self.wr = R[0] | R[1]; self.rd = R[0] | R[1]
            elif mn.startswith('v_nop'):
                pass
            else:
                self.wr = R[0]; self.rd = U(R[1:])
                if mn.startswith(('v_fmac', 'v_dot2c', 'v_pk_fmac', 'v_writelane', 'v_fma_mixlo', 'v_fma_mixhi')) or self.dpp or 'sdwa' in mn: self.rd |= R[0]
        elif mn.startswith('ds_'):
            self.cls = 'ds'
            if mn.startswith(('ds_read', 'ds_bpermute', 'ds_permute', 'ds_swizzle')) or '_rtn' in mn:
                self.wr = R[0]; self.rd = U(R[1:])
            else: self.rd = U(R)
        elif mn.startswith('buffer_'):
            self.cls = 'vmem'
            if mn.startswith(('buffer_inv', 'buffer_wbl2')): pass
            elif mn.startswith('buffer_load'):
                if 'lds' in fl: self.rd = U(R) | {('s', 124)}
                else: self.wr = R[0]; self.rd = U(R[1:])
            else:
                self.rd = U(R)
                if 'atomic' in mn and 'sc0' in fl: self.wr = R[0]
                if mn.endswith(('x3', 'x4')): self.wide_store_data = R[0]
        elif mn.startswith('global_'):
            self.cls = 'vmem'
            if mn.startswith('global_load_lds'): self.rd = U(R) | {('s', 124)}
            elif mn.startswith('global_load'): self.wr = R[0]; self.rd = U(R[1:])
            elif 'atomic' in mn and 'sc0' in fl: self.wr = R[0]; self.rd = U(R[1:])
            else:
                self.rd = U(R)
                if mn.endswith(('x3', 'x4')): self.wide_store_data = R[1]
        elif mn.startswith(('s_load', 's_buffer_load', 's_memtime', 's_memrealtime', 's_atomic')):
            self.cls = 'smem'; self.wr = R[0]; self.rd = U(R[1:])
        elif mn.startswith('s_'):
            self.cls = 'salu'
            if mn.startswith(('s_branch', 's_cbranch')): self.target = ops[0]
            if mn == 's_nop': self.states = int(ops[0], 0) + 1
            if mn.startswith(SALU_NODST): self.rd = U(R)
            else:
                self.wr = R[0]; self.rd = U(R[1:])
                if mn.endswith('saveexec_b64'): self.wr |= regs_of('exec'); self.rd |= regs_of('exec')
                if mn.startswith(('s_addk', 's_mulk', 's_cmov')): self.rd |= R[0]
        else:
            raise ValueError('cannot parse: ' + text)

def need_states(p, c):
    n = 0
    vw = {r for r in p.wr if r[0] in 'va'}
    sw = {r for r in p.wr if r[0] == 's'}
    if p.cls == 'valu':
        isdot = p.mn.startswith('v_dot')
        if c.cls == 'mfma' and vw & c.rd: n = max(n, 3 if isdot else 2)
        if isdot and (vw & (c.rd | c.wr)):
            same_c = (c.mn == p.mn) and not (vw & set().union(*[regs_of(o) for o in c.ops[1:3]]))
            if not same_c: n = max(n, 3)
        if p.mn.startswith(TRANS) and vw & c.rd and not c.mn.startswith(TRANS): n = max(n, 1)
        if c.cls == 'valu':
            if c.dpp and vw & c.rd: n = max(n, 2)
            if c.mn.startswith(('v_readlane', 'v_readfirstlane')) and vw & c.rd: n = max(n, 1)
            if c.mn.startswith('v_permlane') and vw & c.rd: n = max(n, 2)
            if sw & c.rd:
                n = max(n, 4 if c.mn.startswith(('v_readlane', 'v_writelane')) else 2)
            if ('op_sel' in p.flags and not p.mn.startswith(('v_pk_', 'v_fma_mix_f32'))) or 'sdwa' in p.mn or p.mn.startswith(('v_fma_mixlo', 'v_fma_mixhi')):
                if vw & (c.rd | c.wr): n = max(n, 1)
        if c.cls in ('vmem',) and sw & c.rd: n = max(n, 5)
        if c.cls == 'mfma' and sw & c.rd: n = max(n, 2)
    elif p.cls == 'mfma':
        P = p.passes
        if c.cls == 'mfma':
            if vw & c.srcab: n = max(n, {4: 8, 8: 12}[P])
            if vw & c.srcc:
                if not (c.srcc == vw and c.passes == P): n = max(n, {4: 6, 8: 10}[P])
        elif c.cls in ('valu', 'vmem', 'ds'):
            if vw & (c.rd | c.wr): n = max(n, {4: 8, 8: 12}[P])
            if c.cls == 'valu' and p.srcc & c.wr: n = max(n, {4: 3, 8: 7}[P])
    elif p.cls == 'vmem':
        if p.wide_store_data & c.wr: n = max(n, 2 if c.cls in ('valu', 'mfma') else 1)
    elif p.cls == 'salu':
        if ('s', 124) in p.wr and ('s', 124) in c.rd and c.cls in ('vmem', 'ds'): n = max(n, 1)
    return n

class Kern:
    def __init__(self, name, shares=None):
        self.name = name; self.ins = []; self._opt = False; self.shares = shares
        self.maxv = -1; self.maxa = -1; self.maxs = -1
    def __call__(self, text):
        for line in text.split('\n'):
            if not line.strip(): continue
            if '@opt' in line:
                self._optn = getattr(self, '_optn', 0) + 1
                i = Ins(line.replace('@opt', '').strip(), self._opt); i.solo = self._optn
                self.ins.append(i)
            else: self.ins.append(Ins(line.strip(), self._opt))
    def optional(self, on):
        self._optn = getattr(self, '_optn', 0) + 1
        self._opt = self._optn if on else False
    def _waitcnt_pass(self):
        out = []; vm = []; lg = []; smem = set(); tags = {}; seen = set(); keep = []
        cur = False; sv = None
        for i in self.ins:
            if i.opt != cur:
                if cur:
                    vm = sv[0] + [e for e in vm if not any(e is x for x in sv[0])]; lg = sv[1] + [e for e in lg if e[1] == cur]; smem = smem | sv[2]
                cur = i.opt
                if cur: sv = (list(vm), list(lg), set(smem))
            if i.cls in ('label', 'dir'):
                out.append(i); continue
            if i.cls == 'waitvm':
                assert i.tag in seen, 'unknown tag ' + i.tag
                idx = -1
                for k, e in enumerate(vm):
                    if tags.get(id(e)) == i.tag: idx = k
                if idx >= 0:
                    n = sum(1 for (r, o) in vm[idx+1:] if not o or o == i.opt)
                    assert n <= 63 or True
                    out.append(Ins(f's_waitcnt vmcnt({min(n, 63)})', i.opt)); vm = vm[idx+1:]
                continue
            if i.mn == 's_waitcnt':
                m = re.search(r'vmcnt\((\d+)\)', i.text)
                if m:
                    n = int(m.group(1))
                    while vm and sum(1 for (r, o) in vm[1:] if not o or o == i.opt) >= n:
                        vm.pop(0)
                m = re.search(r'lgkmcnt\((\d+)\)', i.text)
                if m:
                    n = int(m.group(1))
                    if n == 0: lg = []; smem = set()
                    elif not smem:
                        while lg and sum(1 for (r, o) in lg[1:] if not o or o == i.opt) >= n: lg.pop(0)
                out.append(i); continue
            touch = i.rd | i.wr
            w = []
            idx = -1
            for k, (regs, opt) in enumerate(vm):
                if regs & touch: idx = k
            if idx >= 0:
                n = sum(1 for (r, o) in vm[idx+1:] if not o or o == i.opt)
                n = min(n, 63)
                w.append(f'vmcnt({n})'); vm = vm[idx+1:]
            if smem & touch:
                w.append('lgkmcnt(0)'); lg = []; smem = set()
            else:
                idx = -1
                ltouch = i.rd if i.cls == 'ds' else touch
                for k, (regs, opt) in enumerate(lg):
                    if regs & ltouch: idx = k
                if idx >= 0:
                    n = sum(1 for (r, o) in lg[idx+1:] if not o or o == i.opt)
                    if smem: n = 0; smem = set(); lg = []
                    else: lg = lg[idx+1:]
                    w.append(f'lgkmcnt({min(n, 15)})')
            if w: out.append(Ins('s_waitcnt ' + ' '.join(w), i.opt))
            out.append(i)
            if i.cls == 'vmem':
                e = (set(i.wr), i.solo or i.opt); vm.append(e); keep.append(e)
                if i.tag: tags[id(e)] = i.tag; seen.add(i.tag)
            elif i.cls == 'ds': lg.append((set(i.wr), i.opt))
            elif i.cls == 'smem': smem |= i.wr
            if i.mn == 's_endpgm': vm = []; lg = []; smem = set()
        self.ins = out
    def _hazard_pass(self):
        W = 24
        saved = {}
        for rep in range(2):
            out = []; hist = []
            for i in self.ins:
                if i.cls == 'label':
                    hist = hist + [[p, d] for p, d in saved.get(i.label, [])]
                    out.append(i); continue
                if i.cls == 'dir':
                    out.append(i); continue
                need = 0
                for p, d in hist:
                    need = max(need, need_states(p, i) - d)
                if need > 0 and rep == 1:
                    out.append(Ins(f's_nop {need-1}', i.opt))
                    for h in hist: h[1] += need
                out.append(i)
                for h in hist: h[1] += i.states
                hist = [h for h in hist if h[1] < W]
                hist.append([i, 0])
                if i.target is not None and rep == 0:
                    saved.setdefault(i.target, []).extend([(p, d) for p, d in hist])
                if i.mn in ('s_endpgm', 's_branch'): hist = []
            if rep == 1: self.ins = out
    def finalize(self):
        self._waitcnt_pass(); self._hazard_pass()
        for i in self.ins:
            for k, n in (i.rd | i.wr):
                if k == 'v': self.maxv = max(self.maxv, n)
                elif k == 'a': self.maxa = max(self.maxa, n)
                elif k == 's' and n < 102: self.maxs = max(self.maxs, n)
        if self.shares is not None:
            o = self.shares
            assert o.maxv >= 0, 'finalize the shared kernel first'
            self.maxv = max(self.maxv, o.maxv); self.maxa = max(self.maxa, o.maxa); self.maxs = max(self.maxs, o.maxs)
            assert ((self.maxv + 4) // 4) == ((o.maxv + 4) // 4) or o.maxa < 0
        body = '\n'.join(('' if i.cls == 'label' else ' ') + i.text for i in self.ins)
        name = self.name
        text = f'.globl {name}\n.p2align 8\n.type {name},@function\n{name}:\n{body}\n'
        acc = max(4, ((self.maxv + 1 + 3) // 4) * 4)
        nfv = acc + self.maxa + 1 if self.maxa >= 0 else self.maxv + 1
        assert acc <= 256 and nfv <= 512, (acc, nfv)
        desc = (f'.amdhsa_kernel {name}\n  .amdhsa_next_free_vgpr {max(nfv,1)}\n  .amdhsa_next_free_sgpr {max(self.maxs+1, 8)}\n'
                f'  .amdhsa_accum_offset {acc}\n  .amdhsa_group_segment_fixed_size 0\n  .amdhsa_kernarg_size 72\n'
                f'  .amdhsa_user_sgpr_count 2\n  .amdhsa_user_sgpr_kernarg_segment_ptr 1\n  .amdhsa_system_sgpr_workgroup_id_x 1\n'
                f'  .amdhsa_float_denorm_mode_32 3\n.end_amdhsa_kernel\n')
        return text, desc

def write_module(path, launches, kerns, header=''):
    s = header
    for (n, g, b, l) in launches:
        s += f'; @launch kernel={n} grid=({g},1,1) block=({b},1,1) lds={l}\n'
    s += '.amdgcn_target "amdgcn-amd-amdhsa--gfx950"\n.text\n'
    fin = [k.finalize() for k in kerns]
    for t, d in fin: s += t
    s += '.section .rodata,"a"\n'
    for t, d in fin: s += '.p2align 6\n' + d
    open(path, 'w').write(s)
    return fin


def merge(a, b, ratio=None):
    out = []; na, nb = len(a), len(b)
    if na == 0: return list(b)
    j = 0
    for i, x in enumerate(a):
        out.append(x)
        want = (i + 1) * nb // na if ratio is None else min(nb, (i + 1) * ratio)
        while j < want: out.append(b[j]); j += 1
    out += b[j:]
    return out

class Rec:
    def __init__(self): self.l = []
    def __call__(self, text):
        for line in text.split('\n'):
            if line.strip(): self.l.append(line.strip())
```

```python
import struct, sys, os
from asmlib import *
from layout import *

def f2u(x): return struct.unpack('<I', struct.pack('<f', x))[0]
def fl(x): return '0x%08x' % f2u(x)
def vr(b, n=4): return f'v[{b}:{b+n-1}]'
def ar(b, n=4): return f'a[{b}:{b+n-1}]'
MF = 'v_mfma_f32_16x16x32_bf16'
SC = (2/576)**0.5
LOG2E = 1.4426950408889634; LN2 = 0.6931471805599453

PROF = bool(os.environ.get("PROF"))
PROFB = 0x1A00000
PG = os.environ.get('PG', 'A')
def stamp(k, n, grp='A'):
    if PROF and (grp == PG or n in (0, 14)): k(f"s_memtime s[{64+2*n}:{65+2*n}]")
def count(k, n, sreg):
    if PROF and PG == 'C': k(f"s_waitcnt lgkmcnt(0)\ns_add_u32 s{64+2*n}, s64, s{sreg}")
def prof_init(k, kid):
    if PROF:
        k(f"s_mov_b32 s96, {kid}")
        for n in range(16): k(f"s_mov_b32 s{64+2*n}, 0")
        k("s_memrealtime s[94:95]")
        stamp(k, 0)
def prof_dump(k, drain=True):
    if PROF:
        if drain: k("s_waitcnt vmcnt(0)")
        stamp(k, 14)
        k("s_memrealtime s[90:91]")
        k("s_waitcnt lgkmcnt(0)\ns_mov_b64 exec, -1\nv_mov_b32 v8, 0")
        for n in range(16): k(f"v_writelane_b32 v8, s{64+2*n}, {n}")
        k(f"""s_lshl_b32 s3, s96, 10
s_add_u32 s3, s3, s2
s_lshl_b32 s3, s3, 3
v_lshrrev_b32 v9, 6, v0
v_readfirstlane_b32 s97, v9
s_add_u32 s3, s3, s97
s_lshl_b32 s3, s3, 6
s_add_u32 s3, s3, {hex(PROFB)}
v_lshlrev_b32 v9, 2, v1
s_mov_b64 exec, 0xffff
buffer_store_dword v8, v9, s[8:11], s3 offen
s_mov_b64 exec, -1""")
def endpgm(k):
    prof_dump(k)
    k("s_endpgm")
def emit(k, lines):
    for l in lines:
        if l: k(l)

def srd(k, d, lo, hi, nbytes):
    k(f"s_mov_b32 s{d}, s{lo}\ns_mov_b32 s{d+1}, s{hi}\ns_mov_b32 s{d+2}, {hex(nbytes)}\ns_mov_b32 s{d+3}, 0x20000")
def lane_setup(k):
    k("""v_lshrrev_b32 v1, 6, v0
v_readfirstlane_b32 s20, v1
v_and_b32 v1, 63, v0
v_and_b32 v2, 15, v0
v_bfe_u32 v3, v0, 4, 2
v_lshlrev_b32 v4, 4, v1""")
def cb_setup(k, scb):
    k(f"""s_and_b32 s21, s{scb}, 1
s_xor_b32 s21, s21, 1
s_lshl_b32 s22, s{scb}, 2
s_lshr_b32 s27, s{scb}, 1
s_add_u32 s27, s27, 32""")
def rbcb(k):
    k("""s_and_b32 s23, s2, 7
s_lshl_b32 s23, s23, 2
s_lshr_b32 s3, s2, 3
s_and_b32 s24, s3, 3
s_add_u32 s23, s23, s24
s_lshr_b32 s24, s3, 2
s_lshl2_add_u32 s25, s23, s20""")
    cb_setup(k, 24)
def tau_to_ts(k, src, dst):
    k(f"""s_and_b32 s{dst}, s{src}, 64
s_bfe_u32 s3, s{src}, 0x10004
s_lshl_b32 s3, s3, 5
s_or_b32 s{dst}, s{dst}, s3
s_bfe_u32 s3, s{src}, 0x20001
s_lshl_b32 s3, s3, 3
s_or_b32 s{dst}, s{dst}, s3
s_bfe_u32 s3, s{src}, 0x10003
s_lshl_b32 s3, s3, 2
s_or_b32 s{dst}, s{dst}, s3
s_and_b32 s3, s{src}, 1
s_lshl_b32 s3, s3, 1
s_or_b32 s{dst}, s{dst}, s3
s_bfe_u32 s3, s{src}, 0x10005
s_or_b32 s{dst}, s{dst}, s3""")
def tile_of(slot): return slot

XB = 16
ACC = 88
XO = 45*1024
UP = 117*1024

def rows_dma_setup(k, vrow0, vrow1):
    k(f"""v_and_b32 v8, 7, v1
v_xor_b32 v9, v8, v3
v_lshl_add_u32 v{vrow0}, v9, 4, v{vrow0}
v_xor_b32 v9, 4, v9
v_lshl_add_u32 v{vrow1}, v9, 4, v{vrow1}""")
def rows_read_addr(k, va0, va1, XO=XO):
    k(f"""v_lshrrev_b32 v8, 1, v2
v_xor_b32 v8, v8, v3
v_lshlrev_b32 v9, 7, v2            ; (i>>3)*1024 + (i&7)*128
s_mul_i32 s3, s20, 18432
s_add_u32 s3, s3, {XO}
v_add_u32 v9, s3, v9
v_lshl_add_u32 v{va0}, v8, 4, v9
v_xor_b32 v8, 4, v8
v_lshl_add_u32 v{va1}, v8, 4, v9""")
def rows_read(k, va0, va1):
    order = [x for kk in range(9) for x in (kk, kk+9)]
    for kk in order:
        k(f"ds_read_b128 {vr(XB+4*kk)}, v{(va0, va1)[kk % 2]} offset:{(kk//2)*2048}")

def sym_gemm(swap, extra=(), xrd=None, va='v4', hooks={}):
    out = []
    W = lambda kk, s: ar(20*(kk % 2) + 4*s)
    def rd(kk):
        r = Rec()
        if xrd: xrd(r, kk); xrd(r, kk+9)
        for s in range(5): r(f"ds_read_b128 {W(kk,s)}, {va} offset:{(kk*5+s)*1024}")
        return r.l
    out += rd(0)
    extra = list(extra); ne = len(extra)
    for kk in range(9):
        m = []
        for s in range(5):
            for h in range(2):
                acc = vr(ACC + 8*s + 4*h); x = vr(XB + 4*(kk + 9*h)); c = '0' if kk == 0 else acc
                m.append(f"{MF} {acc}, {x}, {W(kk,s)}, {c}" if swap else f"{MF} {acc}, {W(kk,s)}, {x}, {c}")
        side = rd(kk+1) if kk + 1 < 9 else []
        side += extra[kk*ne//9:(kk+1)*ne//9]
        out += merge(m, side)
        out += hooks.get(kk, [])
    return out

def opt_slot(k, tag, slot, body):
    if slot == 4:
        k(f"s_cmp_eq_u32 s21, 0\ns_cbranch_scc1 L_{tag}_no5"); k.optional(True)
    body()
    if slot == 4:
        k.optional(False); k(f"L_{tag}_no5:")

CODE_PREFETCH = int(os.environ.get('CPF', 1))
TLBW = int(os.environ.get('TLBW', 0))
PF2 = int(os.environ.get('PF2', 0))
ST = os.environ.get("ST", "")
def trig_setup(k):
    k(f"""s_lshr_b32 s3, s38, 1
s_lshl_b32 s3, s3, 5
s_and_b32 s39, s38, 1
s_lshl2_add_u32 s3, s39, s3
v_add_u32 v10, s3, v8              ; c
v_lshrrev_b32 v11, 1, v10
v_and_b32 v12, 1, v10
v_cvt_f32_u32 v12, v12
v_mul_f32 v12, {fl(0.25)}, v12
v_cvt_f32_u32 v11, v11
v_mul_f32 v11, {fl(1/576)}, v11
v_cmp_eq_u32 vcc, 0, v10
v_cndmask_b32 v11, v11, 0.5, vcc
v_cmp_eq_u32 vcc, 1, v10
v_cndmask_b32 v12, v12, 0, vcc
v_cos_f32 v15, v11
v_add_f32 v15, v15, v15""")

def f_image(k, tag, vb, s5, side=(), side2=()):
    T = 88
    k(f"""s_add_u32 s38, s22, s20
v_lshrrev_b32 v8, 2, v2
v_lshlrev_b32 v8, 3, v8
v_and_b32 v9, 3, v2
v_add_u32 v8, v8, v9
v_lshlrev_b32 v9, 3, v3
v_cvt_f32_u32 v9, v9""")
    trig_setup(k)
    k(f"""v_mul_f32 v13, {fl(32.0)}, v11
v_fma_f32 v{T}, v9, v11, v12
v_add_f32 v{T+8}, v{T}, v13
v_add_f32 v{T+1}, v{T}, v11
v_add_f32 v{T+9}, v{T+8}, v11
v_cos_f32 v13, v13
v_cos_f32 v{T}, v{T}
v_cos_f32 v{T+8}, v{T+8}
v_cos_f32 v{T+1}, v{T+1}
v_cos_f32 v{T+9}, v{T+9}
s_lshl_b32 s3, s20, 10
v_add_u32 v14, s3, {vb}
v_add_f32 v13, v13, v13""")
    kk_ = k; k = Rec()
    for u in range(2, 8): k(f"v_fma_f32 v{T+u}, v15, v{T+u-1}, -v{T+u-2}\nv_fma_f32 v{T+8+u}, v15, v{T+8+u-1}, -v{T+8+u-2}")
    for kk in range(9):
        cur = T + 8*(kk % 2); oth = T + 8*((kk+1) % 2); P = T + 16 + 4*(kk % 2)
        if kk >= 2:
            for u in range(8): k(f"v_fma_f32 v{cur+u}, v13, v{oth+u}, -v{cur+u}")
        for q in range(4): k(f"v_cvt_pk_bf16_f32 v{P+q}, v{cur+2*q}, v{cur+2*q+1}")
        k(f"ds_write_b128 v14, {vr(P)} offset:{kk*5120}")
    k("s_mov_b32 s38, s27\ns_mov_b32 s33, s20")
    trig_setup(k)
    body = k.l; k = kk_
    emit(k, merge(body, list(side)))
    k(f"""L_{tag}_tr:
s_lshl_b32 s3, s33, 5
v_cvt_f32_u32 v13, s3
v_add_f32 v13, v13, v9
v_fma_f32 v13, v13, v11, v12
v_fract_f32 v13, v13
v_add_f32 v{T+1}, v13, v11
v_cos_f32 v{T}, v13
v_cos_f32 v{T+1}, v{T+1}
s_mul_i32 s3, s33, 5120
v_add_u32 v14, s3, {vb}""")
    for u in range(2, 8): k(f"v_fma_f32 v{T+u}, v15, v{T+u-1}, -v{T+u-2}")
    for q in range(4): k(f"v_cvt_pk_bf16_f32 v{T+8+q}, v{T+2*q}, v{T+2*q+1}")
    k(f"""s_add_u32 s33, s33, 4
s_cmp_lt_u32 s33, 9
ds_write_b128 v14, {vr(T+8)} offset:4096
s_cbranch_scc1 L_{tag}_tr
L_{tag}_trig_done:""")

def y2_exchange_store(k, tag, sbase, ssbase, LX, st, pk, vss, san=False, defer=False):
    k(f"""v_mov_b32 v11, 1.0
s_and_b32 s38, s20, 1            ; ub
s_lshl_b32 s3, s20, 10
s_add_u32 s3, s3, {LX}
v_mfma_f32_16x16x4_f32 v[128:131], v11, v{vss}, 0
v_lshl_add_u32 v5, v1, 3, s3
v_xor_b32 v6, 0x400, v5
s_cmp_eq_u32 s38, 0
s_cselect_b64 vcc, -1, 0""")
    for q in range(2):
        for r in range(2):
            k(f"v_cndmask_b32 v{132+2*q+r}, v{pk(q)+r}, v{pk(2+q)+r}, vcc")
            k(f"v_cndmask_b32 v{pk(q)+r}, v{pk(2+q)+r}, v{pk(q)+r}, vcc")
        k(f"ds_write_b64 v5, {vr(132+2*q,2)} offset:{512*q}")
    k(f"""ds_write_b32 v5, v128 offset:4096
ds_write_b64 v5, {vr(pk(4),2)} offset:4608
s_lshr_b32 s3, s25, 1
s_lshl_b32 s3, s3, 8
s_add_u32 s39, s3, s{sbase}        ; + pi*256
v_mul_u32_u24 v7, {2*JP_ST}, v3
v_lshl_add_u32 v7, v2, 4, v7
s_lshr_b32 s3, s27, 1
s_lshl_b32 s3, s3, 3
s_and_b32 s35, s27, 1
s_add_u32 s3, s3, s35
s_mul_i32 s3, s3, {JP_ST}
s_add_u32 s34, s3, s39""")
    k(f"""s_lshl_b32 s3, s24, 1
s_add_u32 s3, s3, s38
s_mul_i32 s3, s3, {8*JP_ST}
s_add_u32 s39, s39, s3
s_add_u32 s35, s39, {JP_ST}
s_lshl3_add_u32 s36, s23, s24
s_lshl_b32 s36, s36, 7
s_add_u32 s36, s36, {hex(ssbase)}
v_and_b32 v130, 7, v1
v_lshlrev_b32 v131, 9, v130
v_and_b32 v131, 0x800, v131
v_and_b32 v130, 3, v130
v_lshl_add_u32 v130, v130, 5, v131
v_add_u32 v130, {LX+4096}, v130
s_waitcnt lgkmcnt(0)
s_barrier
ds_read_b64 v[132:133], v6
ds_read_b64 v[134:135], v6 offset:512
ds_read2_b32 v[148:149], v130 offset0:0 offset1:2
ds_read2_b32 v[150:151], v130 offset0:4 offset1:6
v_add_u32 v130, 0x400, v130
ds_read2_b32 v[152:153], v130 offset0:0 offset1:2
ds_read2_b32 v[154:155], v130 offset0:4 offset1:6
ds_read_b64 v[144:145], v6 offset:4608
v_mov_b32 v146, v{pk(4)}
v_mov_b32 v147, v{pk(4)+1}""")
    for q in range(2):
        for r in range(2):
            k(f"v_cndmask_b32 v{136+4*q+r}, v{132+2*q+r}, v{pk(q)+r}, vcc\nv_cndmask_b32 v{138+4*q+r}, v{pk(q)+r}, v{132+2*q+r}, vcc")
        k(f"buffer_store_dwordx4 {vr(136+4*q)}, v7, s[8:11], s{(39,35)[q]} offen {st}")
    for r in range(4): k(f"v_cvt_pk_bf16_f32 v{128+r}, v{148+r}, v{152+r}\nv_min_u32 v{128+r}, -2, v{128+r}")
    ssst = f"""s_cmp_lg_u32 s20, 0
s_cbranch_scc1 L_{tag}_noss
s_mov_b64 exec, 0xff
buffer_store_dwordx4 v[128:131], v4, s[8:11], s{47 if defer else 36} offen {st} @opt
s_mov_b64 exec, -1
L_{tag}_noss:"""
    if defer: k("s_mov_b32 s47, s36")
    else: k(ssst)
    k(f"""s_and_b32 s3, s38, s21
s_cbranch_scc0 L_{tag}_nx5""")
    k.optional(True)
    k(f"buffer_store_dwordx4 v[144:147], v7, s[8:11], s34 offen {st}")
    k.optional(False)
    k(f"L_{tag}_nx5:")
    return ssst

def sumsq(k, tag, val, vdc):
    k(f"v_mul_f32 v8, v{val(0)}, v{val(0)}\nv_mul_f32 v12, v{val(0)+1}, v{vdc}\nv_fmac_f32 v8, v12, v12")
    for s_ in range(4):
        for r in range(4):
            if s_ or r > 1: k(f"v_fmac_f32 v8, v{val(s_)+r}, v{val(s_)+r}")
    k(f"s_cmp_eq_u32 s21, 0\ns_cbranch_scc1 L_{tag}_ss4")
    for r in range(4): k(f"v_fmac_f32 v8, v{val(4)+r}, v{val(4)+r}")
    k(f"L_{tag}_ss4:")
```

```python
from gen4a import *

S1F = "sc1"
F_Q, F_T, F_J = CNT, CNT + 0x8000, CNT + 0xA000
L_LT, L_Q, L_RED, L_FIN, L_EX = 72*1024, 90*1024, 128*1024, 146*1024, 152*1024
L_P2 = 118*1024
SPIN = 0x20000
NREP = int(os.environ.get('NREP', 8)); NSH = int(os.environ.get('NSH', 8)); CST = 768

def sample(tag, vval, vaddr, soff):
    return f"s_cmp_lg_u32 s20, 0\ns_cbranch_scc1 L_{tag}_s\nbuffer_load_dword v{vval}, v{vaddr}, s[8:11], s{soff} offen sc1 @opt\nL_{tag}_s:"

def scan(k, dst, regs):
    regs = list(regs)
    k(f"v_max_u32 v{dst}, v{regs[0]}, v{regs[1]}")
    for i in range(2, len(regs), 2): k(f"v_max3_u32 v{dst}, v{regs[i]}, v{regs[i+1]}, v{dst}")
def p3_map(k):
    k("""s_and_b32 s3, s2, 7
s_lshr_b32 s21, s2, 3
s_lshr_b32 s22, s3, 1
s_lshl_b32 s22, s22, 2
s_and_b32 s23, s21, 3
s_add_u32 s22, s22, s23
s_and_b32 s23, s3, 1
s_lshl_b32 s23, s23, 3
s_lshr_b32 s21, s21, 2
s_add_u32 s23, s23, s21
s_lshl2_add_u32 s24, s22, s20""")

KV0 = int(os.environ.get('KV0', 0)); KVE = int(os.environ.get('KVE', 10))
aKV = 200
def kv_addr_setup(k):
    def voff(n, a): k(f"v_lshrrev_b32 v11, 4, v{n}\nv_mul_u32_u24 v11, 18432, v11\nv_and_b32 v12, 15, v{n}\nv_lshl_add_u32 v11, v12, 4, v11\nv_lshl_add_u32 v11, v3, 8, v11\nv_accvgpr_write_b32 a{a}, v11")
    k(f"""s_and_b32 s3, s20, 1
s_lshl1_add_u32 s3, s60, s3
s_mul_i32 s3, s3, 18
v_add_u32 v10, s3, v2""")
    voff(10, aKV+2)
    k(f"s_lshr_b32 s3, s20, 1\ns_mul_i32 s3, s3, 576\ns_add_u32 s3, s3, 576\nv_add_u32 v10, s3, v10")
    voff(10, aKV)
    k(f"""s_mul_i32 s3, s60, 36
s_add_u32 s3, s3, 16
v_bfe_u32 v10, v2, 2, 1
v_mul_u32_u24 v10, 18, v10
v_and_b32 v11, 1, v2
v_add3_u32 v10, v10, v11, s3
v_bfe_u32 v11, v2, 1, 1
v_xor_b32 v11, 1, v11
v_cmp_gt_u32 vcc, 8, v2
v_cndmask_b32 v11, v11, 2, vcc
v_mul_u32_u24 v11, 576, v11
v_add_u32 v10, v10, v11""")
    voff(10, aKV+1)
def kv_dma(n0, n1):
    return [(f"buffer_load_dwordx4 v253, s[8:11], s61 offen sc1 lds\ns_add_u32 s61, s61, 1024\ns_add_u32 m0, m0, 4096" if m < 18 else
             f"buffer_load_dwordx4 v254, s[8:11], s62 offen sc1 lds\ns_add_u32 s62, s62, 4096\ns_add_u32 m0, m0, 4096") for m in range(n0, n1)]
def q_dma(): return [f"buffer_load_dwordx4 v255, s[8:11], s63 offen sc1 lds\ns_add_u32 s63, s63, 2048\ns_add_u32 m0, m0, 4096"]
def kv_last(k, tag):
    k(f"s_cmp_ge_u32 s20, 2\ns_cbranch_scc1 L_{tag}_n22")
    k.optional(True); emit(k, kv_dma(22, 23)); k.optional(False)
    k(f"L_{tag}_n22:")
def kv_dma_start(k):
    k(f"""s_mov_b32 s61, {hex(WQ)}
s_lshl_b32 s3, s20, 10
s_mov_b32 m0, s3
s_add_u32 s62, s61, s3
s_cmp_lt_u32 s20, 2
s_cselect_b32 s3, 1024, 0
s_add_u32 s63, s61, s3
v_accvgpr_read_b32 v253, a{aKV}
v_accvgpr_read_b32 v254, a{aKV+1}
v_accvgpr_read_b32 v255, a{aKV+2}""")

P2_RAW, P2_SSR, P2_TW = 232, 168, 56
aF2, aF4, aF1, aSEL, aTW = 64, 88, 136, 160, 168
CSLEEP = int(os.environ.get('CSLEEP', 6))
def spin_check(k, tag, vval, vaddr, soff):
    k(f"""s_mov_b32 s34, 0
s_cmp_lg_u32 s20, 0
s_cbranch_scc1 L_{tag}_k
L_{tag}_c:
v_cmp_ne_u32 vcc, 1, v{vval}
s_cbranch_vccz L_{tag}_k
s_add_u32 s34, s34, 1
s_cmp_gt_u32 s34, {SPIN}
s_cbranch_scc1 L_{tag}_k
s_sleep {CSLEEP}""")
    k.optional(True)
    k(f"buffer_load_dword v{vval}, v{vaddr}, s[8:11], s{soff} offen sc1\ns_waitcnt vmcnt(0)")
    k.optional(False)
    k(f"s_branch L_{tag}_c\nL_{tag}_k:")
def flag_lines(tag, soff, cond=None, va=12):
    return [f"""v_mov_b32 v{va}, 1
v_mov_b32 v{va+1}, 1
v_mov_b32 v{va+2}, 1
v_mov_b32 v{va+3}, 1
s_waitcnt vmcnt(0)
s_barrier
{cond if cond else 's_cmp_lg_u32 s20, 0'}
s_cbranch_scc1 L_{tag}_arr
s_mov_b64 exec, 0xff
buffer_store_dwordx4 {vr(va)}, v4, s[8:11], s{soff} offen sc1 @opt
s_mov_b64 exec, -1
L_{tag}_arr:"""]
def fq_addr(k, v):
    k(f"""s_and_b32 s3, s2, 1
s_lshl_b32 s3, s3, 3
s_lshr_b32 s36, s2, 5
s_add_u32 s3, s3, s36
s_mul_i32 s3, s3, 36
v_min_u32 v{v}, 2, v3
v_mul_u32_u24 v{v}, 576, v{v}
v_bfe_u32 v8, v1, 3, 1
v_mul_u32_u24 v8, 35, v8
v_add3_u32 v{v}, v{v}, v8, s3
v_lshrrev_b32 v{v}, 6, v{v}
v_and_b32 v8, 7, v1
v_lshl_add_u32 v{v}, v{v}, 3, v8
v_lshlrev_b32 v{v}, 7, v{v}
s_mov_b32 s36, {hex(F_Q)}""")

def p2_consts(LB):
    C1, S1, N1, TW1, TW2 = 160, 168, 176, 160, 176
    PK = lambda c: 184
    TMP = 208; SEL = 224; F2, F4 = aF2, aF4
    L_F1, L_F2 = 0, 24576
    FA, BA, G4 = TMP+8, TMP+9, TMP+10
    c1 = Rec()
    c1(f"""s_lshl_b32 s3, s20, 4
v_add_u32 v{FA}, s3, v2
v_cvt_f32_u32 v{FA}, v{FA}
v_mul_f32 v{FA}, {fl(1/64)}, v{FA}
v_lshlrev_b32 v{G4}, 2, v3
v_cvt_f32_u32 v{G4}, v{G4}
v_mul_f32 v{BA}, v{FA}, v{G4}
s_mul_i32 s3, s20, 6144
v_add_u32 v227, s3, v226""")
    for ks in range(2):
        for q in range(4):
            for h in range(2):
                u = 2*q + h; cst = 32*ks + 16*(u//4) + u % 4
                c1(f"v_fmamk_f32 v{TMP+h}, v{FA}, {fl(float(cst))}, v{BA}")
            c1(f"""v_cos_f32 v{TMP+2}, v{TMP}
v_cos_f32 v{TMP+3}, v{TMP+1}
v_sin_f32 v{TMP+4}, v{TMP}
v_sin_f32 v{TMP+5}, v{TMP+1}
v_cvt_pk_bf16_f32 v{C1+4*ks+q}, v{TMP+2}, v{TMP+3}
v_cvt_pk_bf16_f32 v{S1+4*ks+q}, v{TMP+4}, v{TMP+5}
v_cvt_pk_bf16_f32 v{N1+4*ks+q}, -v{TMP+4}, -v{TMP+5}""")
        for kind, b in enumerate((C1, S1, N1)):
            c1(f"ds_write_b128 v227, {vr(b+4*ks)} offset:{L_F1 + (kind*2+ks)*1024}")
    c1(f"""s_lshl_b32 s3, s101, 4
v_add_u32 v{TMP+11}, s3, v2
v_cvt_f32_u32 v{TMP+11}, v{TMP+11}
v_mul_f32 v{TMP+11}, {fl(1/32)}, v{TMP+11}
s_lshl_b32 s3, s44, 4
v_cvt_f32_u32 v{TMP+12}, s3
v_add_f32 v{TMP+12}, v{TMP+12}, v{G4}
v_mul_f32 v{TMP+12}, v{TMP+12}, v{TMP+11}
s_lshl_b32 s3, s101, 10
s_lshl3_add_u32 s3, s44, s3
v_add_u32 v227, s3, v226""")
    P0 = PK(0)
    for q in range(2):
        for h in range(2):
            c1(f"v_fmamk_f32 v{TMP+h}, v{TMP+11}, {fl(float(2*q+h))}, v{TMP+12}")
        c1(f"""v_cos_f32 v{TMP+2}, v{TMP}
v_cos_f32 v{TMP+3}, v{TMP+1}
v_sin_f32 v{TMP+4}, v{TMP}
v_sin_f32 v{TMP+5}, v{TMP+1}
v_cvt_pk_bf16_f32 v{P0+q}, v{TMP+2}, v{TMP+3}
v_cvt_pk_bf16_f32 v{P0+2+q}, v{TMP+4}, v{TMP+5}
v_cvt_pk_bf16_f32 v{P0+4+q}, -v{TMP+4}, -v{TMP+5}""")
    for kind in range(3): c1(f"ds_write_b64 v227, {vr(P0+2*kind, 2)} offset:{L_F2 + kind*2048}")
    c1(f"v_mul_f32 v{FA}, {fl(1/32)}, v{FA}\nv_mul_f32 v{BA}, {fl(1/32)}, v{BA}")
    for e in range(8):
        cst = 16*(e//4) + e % 4
        c1(f"v_fmamk_f32 v{TMP+e%2}, v{FA}, {fl(float(cst))}, v{BA}\nv_cos_f32 v{TW1+e}, v{TMP+e%2}\nv_sin_f32 v{TW1+8+e}, v{TMP+e%2}")
    c1(f"""s_lshl_b32 s3, s20, 4
v_cvt_f32_u32 v{TMP+12}, s3
v_add_f32 v{TMP+12}, v{TMP+12}, v{G4}
v_cvt_f32_u32 v{TMP+11}, v2""")
    for t in range(2):
        c1(f"""v_add_f32 v{FA}, {fl(16.0*t)}, v{TMP+11}
v_mul_f32 v{FA}, {fl(1/2048)}, v{FA}
v_mul_f32 v{BA}, v{FA}, v{TMP+12}""")
        for r in range(4):
            e = 4*t + r
            c1(f"v_fmamk_f32 v{TMP+e%2}, v{FA}, {fl(float(r))}, v{BA}\nv_cos_f32 v{TW2+e}, v{TMP+e%2}\nv_sin_f32 v{TW2+8+e}, v{TMP+e%2}")
    c1(f"""v_and_b32 v{TMP}, 1, v2
v_lshlrev_b32 v{TMP}, 4, v{TMP}
v_mov_b32 v{TMP+1}, 0x3f80
v_lshlrev_b32 v{TMP}, v{TMP}, v{TMP+1}
v_lshrrev_b32 v{TMP+1}, 1, v2
v_lshlrev_b32 v{TMP+2}, 1, v3
v_cmp_eq_u32 vcc, v{TMP+1}, v{TMP+2}
v_cndmask_b32 v{SEL}, 0, v{TMP}, vcc
v_add_u32 v{TMP+2}, 1, v{TMP+2}
v_cmp_eq_u32 vcc, v{TMP+1}, v{TMP+2}
v_cndmask_b32 v{SEL+4}, 0, v{TMP}, vcc""")
    c1(f"v_accvgpr_write_b32 a{aSEL+2}, v{SEL}\nv_accvgpr_write_b32 a{aSEL+3}, v{SEL+4}")
    for r in (0, 1, 4, 5): c1(f"v_accvgpr_write_b32 a{aSEL+r}, 0")
    f4 = lambda mt, kind, ks: ar(F4 + 24*mt + 8*kind + 4*ks)
    for r in range(32): c1(f"v_accvgpr_write_b32 a{aTW+r}, v{TW1+r}")
    pre = [f"v_add_u32 v226, {LB}, v4", "s_lshr_b32 s101, s20, 1", "s_and_b32 s44, s20, 1"]
    nf1 = min(i for i, l in enumerate(c1.l) if 'ds_write_b128' in l)
    nf2 = max(i for i, l in enumerate(c1.l) if 'ds_write_b64' in l) + 1
    rd = [f"s_mul_i32 s3, s101, 12288\nv_add_u32 v{TMP+14}, s3, v226\ns_mul_i32 s3, s20, 6144\nv_add_u32 v{TMP+13}, s3, v226"]
    rd += [f"ds_read_b128 {ar(F2+8*kind+4*t)}, v226 offset:{L_F2 + kind*2048 + t*1024}" for kind in range(3) for t in range(2)]
    rd += [f"ds_read_b128 {f4(mt,kind,ks)}, v{TMP+14} offset:{L_F1 + mt*6144 + (kind*2+ks)*1024}" for mt in range(2) for kind in range(3) for ks in range(2)]
    rd += [f"ds_read_b128 {ar(aF1+4*i)}, v{TMP+13} offset:{L_F1 + i*1024}" for i in range(6)]
    return pre + c1.l[:nf1], c1.l[nf1:nf2], rd, c1.l[nf2:]

def p2_addr(xin, xout, ss):
    return [f"""s_lshl_b32 s30, s20, 13
s_add_u32 s30, s30, {hex(ss)}
v_lshrrev_b32 v249, 3, v1
v_lshlrev_b32 v249, 10, v249
v_and_b32 v248, 7, v1
v_lshl_add_u32 v249, v248, 4, v249
s_mul_i32 s33, s98, {JP_ST}
s_lshl_b32 s3, s20, 12
s_add_u32 s33, s33, s3
s_add_u32 s44, s33, {hex(xin)}
s_add_u32 s33, s33, {hex(xout)}"""]
def p2_data_loads():
    return ([f"buffer_load_dwordx4 {vr(P2_SSR+4*h)}, v249, s[8:11], s30 offen offset:{128*h} {S1F}" for h in range(8)] +
            [f"buffer_load_dwordx4 {vr(P2_RAW+4*v)}, v4, s[8:11], s44 offen offset:{1024*v} {S1F}" for v in range(4)])
def ss_wait(k, tag):
    k(f"s_mov_b32 s34, 0\nL_{tag}_c:")
    scan(k, 8, range(P2_SSR, P2_SSR+32))
    k(f"""v_cmp_eq_u32 vcc, -1, v8
s_cbranch_vccz L_{tag}_k
s_add_u32 s34, s34, 1
s_cmp_gt_u32 s34, {SPIN}
s_cbranch_scc1 L_{tag}_k
s_sleep 2""")
    k.optional(True); emit(k, p2_data_loads()[:8]); k("s_waitcnt vmcnt(0)"); k.optional(False)
    k(f"s_branch L_{tag}_c\nL_{tag}_k:")
def p2_restore(): return [f"v_accvgpr_read_b32 v{P2_TW+r}, a{aTW+r}" for r in range(32)]

def phase_P2(k):
    RAW, SSV, SSR = P2_RAW, 224, P2_SSR
    TW1, TW2 = P2_TW, P2_TW + 16
    XR = lambda c: 88 + 16*c
    XI = lambda c: 96 + 16*c
    AC = lambda c: 120 + 16*c
    PK = lambda c: 152 + 8*c
    WR = lambda c: 168 + 16*c
    WI = lambda c: 176 + 16*c
    TM = lambda c: 200 + 4*c
    TMP = 208
    DAT = lambda c: 32*c
    F2, F4 = aF2, aF4
    L_X1, L_U = 0, 16384
    f4 = lambda mt, kind, ks: ar(F4 + 24*mt + 8*kind + 4*ks)
    WRAW = 32
    def wt_loads(): return [f"buffer_load_dwordx2 {vr(WRAW+2*e,2)}, v6, s[8:11], s{(29,35)[e//4]} offen offset:{512*(e % 4)} sc1" for e in range(8)]
    k("L_p2_l1:")
    emit(k, p2_addr(XH2, XH3, SS2))
    kv_dma_start(k)
    emit(k, merge(kv_dma(0, KVE), p2_restore()))
    k("s_mov_b32 s34, 0\nL_p2_poll:")
    emit(k, p2_data_loads())
    scan(k, TMP, list(range(SSR, SSR+32)) + list(range(RAW, RAW+16)))
    k(f"""v_cmp_eq_u32 vcc, -1, v{TMP}
s_add_u32 s34, s34, 1
s_cmp_gt_u32 s34, {SPIN}
s_cbranch_scc1 L_p2_go
s_cbranch_vccnz L_p2_poll
L_p2_go:
s_lshr_b32 s25, s20, 1             ; j2
s_and_b32 s26, s20, 1              ; t
s_mul_i32 s29, s98, {JP_ST}
s_lshl_b32 s28, s20, 7
s_add_u32 s29, s29, s28
s_add_u32 s29, s29, {hex(WT)}
s_add_u32 s35, s29, 8192
v_lshlrev_b32 v6, 11, v3
v_lshl_add_u32 v6, v2, 3, v6
v_add_u32 v5, {L_P2}, v4
s_lshl_b32 s3, s25, 10
s_lshl3_add_u32 s3, s26, s3
v_add_u32 v7, s3, v5
s_mov_b32 s32, {fl(2048.0*2048.0/576)}
v_mov_b32 v{TMP+15}, {fl(1e-5*2048*2048)}
s_lshl_b32 s3, s20, 10
v_add_u32 v{TMP+14}, s3, v5""")
    stamp(k, 1); count(k, 1, 34)
    k(f"s_cmp_eq_u32 s98, 0\ns_cselect_b32 s31, 0, 0xffff0000")
    for h in range(8):
        for hf in range(2):
            d = vr(TMP + 4*hf)
            k(f"{MF} {d}, {ar(aSEL+2-2*hf)}, {vr(SSR+4*h)}, {'0' if h == 0 else d}")
    k(f"""s_lshl_b32 s3, s20, 11
s_add_u32 s3, s3, {L_P2 + L_U}
v_lshl_add_u32 v8, v1, 5, s3
v_lshl_add_u32 v9, v1, 3, s3""")
    for u in range(8):
        k(f"v_fma_f32 v{TMP+u}, v{TMP+u}, s32, v{TMP+15}\nv_rsq_f32 v{TMP+u}, v{TMP+u}")
    k(f"ds_write_b128 v8, {vr(TMP)}\nds_write_b128 v8, {vr(TMP+4)} offset:16")
    for v in range(4): k(f"ds_read_b64 {vr(SSV+2*v,2)}, v9 offset:{512*v}")
    k("L_p2_raw:\ns_waitcnt vmcnt(2)")
    for c in range(2):
        for u in range(8):
            k(f"v_lshlrev_b32 v{XR(c)+u}, 16, v{RAW+2*u+c}\nv_and_b32 v{XI(c)+u}, {'s31' if c == 0 else '0xffff0000'}, v{RAW+2*u+c}")
    for c in range(2):
        for q in range(4):
            k(f"v_pk_mul_f32 {vr(TMP,2)}, {vr(XR(c)+2*q,2)}, {vr(SSV+2*q,2)}\nv_pk_mul_f32 {vr(TMP+2,2)}, {vr(XI(c)+2*q,2)}, {vr(SSV+2*q,2)}")
            k(f"v_cvt_pk_bf16_f32 v{PK(c)+q}, v{TMP}, v{TMP+1}\nv_cvt_pk_bf16_f32 v{PK(c)+4+q}, v{TMP+2}, v{TMP+3}")
        k(f"ds_write_b128 v{TMP+14}, {vr(PK(c))} offset:{L_X1+8192*c}\nds_write_b128 v{TMP+14}, {vr(PK(c)+4)} offset:{L_X1+8192*c+4096}")
    k("s_waitcnt lgkmcnt(0)")
    emit(k, flag_lines('p2q', 46, "s_add_u32 s3, s20, s45\ns_cmp_lg_u32 s3, 0"))
    stamp(k, 2)
    dat = lambda c, pl, ks, t: ar(DAT(c) + 16*pl + 4*(2*ks+t))
    def rd1(c):
        return [f"ds_read_b128 {dat(c, pl, ks, t)}, v5 offset:{L_X1 + 8192*c + 4096*pl + 1024*(2*ks+t)}" for t in range(2) for ks in range(2) for pl in range(2)]
    AR = lambda c, t: vr(AC(c) + 4*t)
    AI = lambda c, t: vr(AC(c) + 8 + 4*t)
    def st1(c):
        r = Rec()
        for t in range(2):
            for ks in range(2):
                r(f"{MF} {AR(c,t)}, {dat(c,0,ks,t)}, {ar(aF1+4*ks)}, {'0' if ks == 0 else AR(c,t)}")
                r(f"{MF} {AI(c,t)}, {dat(c,1,ks,t)}, {ar(aF1+4*ks)}, {'0' if ks == 0 else AI(c,t)}")
                r(f"{MF} {AR(c,t)}, {dat(c,1,ks,t)}, {ar(aF1+8+4*ks)}, {AR(c,t)}")
                r(f"{MF} {AI(c,t)}, {dat(c,0,ks,t)}, {ar(aF1+16+4*ks)}, {AI(c,t)}")
        return r.l
    def cmul(c, cr, ci, conj):
        r = Rec(); T = TM(c)
        for q in range(4):
            for h in range(2):
                e = 2*q + h; xr = AC(c) + e; xi = AC(c) + 8 + e
                r(f"v_mul_f32 v{T+h}, v{xr}, v{cr+e}\nv_mul_f32 v{T+2+h}, v{xi}, v{cr+e}")
                if conj: r(f"v_fmac_f32 v{T+h}, v{xi}, v{ci+e}\nv_fma_f32 v{T+2+h}, -v{xr}, v{ci+e}, v{T+2+h}")
                else: r(f"v_fma_f32 v{T+h}, -v{xi}, v{ci+e}, v{T+h}\nv_fmac_f32 v{T+2+h}, v{xr}, v{ci+e}")
            r(f"v_cvt_pk_bf16_f32 v{PK(c)+q}, v{T}, v{T+1}\nv_cvt_pk_bf16_f32 v{PK(c)+4+q}, v{T+2}, v{T+3}")
        return r.l
    C2 = lambda t: ar(F2+4*t); S2 = lambda t: ar(F2+8+4*t); N2 = lambda t: ar(F2+16+4*t)
    def st2(c):
        r = Rec(); PR, PI = vr(PK(c)), vr(PK(c)+4)
        for t in range(2):
            r(f"{MF} {AR(c,t)}, {C2(t)}, {PR}, 0\n{MF} {AI(c,t)}, {C2(t)}, {PI}, 0")
            r(f"{MF} {AR(c,t)}, {S2(t)}, {PI}, {AR(c,t)}\n{MF} {AI(c,t)}, {N2(t)}, {PR}, {AI(c,t)}")
        return r.l
    def st3(c):
        r = Rec(); PR, PI = vr(PK(c)), vr(PK(c)+4)
        for t in range(2):
            r(f"{MF} {AR(c,t)}, {PR}, {C2(t)}, 0\n{MF} {AI(c,t)}, {PI}, {C2(t)}, 0")
            r(f"{MF} {AR(c,t)}, {PI}, {N2(t)}, {AR(c,t)}\n{MF} {AI(c,t)}, {PR}, {S2(t)}, {AI(c,t)}")
        return r.l
    def wru(c):
        return [f"ds_write_b64 v7, {vr(PK(c)+4*pl+2*t, 2)} offset:{L_U + 8192*c + pl*4096 + t*2048}" for pl in range(2) for t in range(2)]
    misc = Rec()
    for c in range(2):
        for e in range(8): misc(f"v_lshlrev_b32 v{WR(c)+e}, 16, v{WRAW+2*e+c}\nv_and_b32 v{WI(c)+e}, 0xffff0000, v{WRAW+2*e+c}")
    mv = lambda m, v, lead=2: merge(m, v, ratio=lead)
    emit(k, rd1(0))
    emit(k, merge(st1(0), merge(rd1(1), wt_loads())))
    emit(k, mv(st1(1), cmul(0, TW1, TW1+8, True)))
    emit(k, mv(st2(0), cmul(1, TW1, TW1+8, True)))
    emit(k, mv(st2(1), misc.l[:16] + cmul(0, WR(0), WI(0), False)))
    emit(k, mv(st3(0), misc.l[16:] + cmul(1, WR(1), WI(1), False)))
    emit(k, mv(st3(1), cmul(0, TW2, TW2+8, False)))
    emit(k, wru(0))
    emit(k, cmul(1, TW2, TW2+8, False))
    emit(k, wru(1))
    k(f"""s_lshl_b32 s3, s26, 11
v_add_u32 v{TMP+14}, s3, v5
s_or_b32 s31, s31, 0xffff
s_waitcnt lgkmcnt(0)
s_barrier""")
    ud = lambda c, pl, ks: ar(DAT(c) + 8*pl + 4*ks)
    for c in range(2):
        for ks in range(2):
            for pl in range(2):
                k(f"ds_read_b128 {ud(c,pl,ks)}, v{TMP+14} offset:{L_U + 8192*c + pl*4096 + ks*1024}")
    def st4(c, mt):
        r = Rec(); r_, i_ = vr(XR(c)+4*mt), vr(XI(c)+4*mt)
        for ks in range(2):
            r(f"{MF} {r_}, {f4(mt,0,ks)}, {ud(c,0,ks)}, {r_}\n{MF} {i_}, {f4(mt,0,ks)}, {ud(c,1,ks)}, {i_}")
            r(f"{MF} {r_}, {f4(mt,2,ks)}, {ud(c,1,ks)}, {r_}\n{MF} {i_}, {f4(mt,1,ks)}, {ud(c,0,ks)}, {i_}")
        return r.l
    OUT = PK(0)
    def fin(mt):
        r = Rec()
        for v in range(2*mt, 2*mt+2):
            for u in (2*v, 2*v+1):
                r(f"v_cvt_pk_bf16_f32 v{OUT+2*u}, v{XR(0)+u}, v{XI(0)+u}\nv_bfi_b32 v{OUT+2*u}, s31, v{OUT+2*u}, v{RAW+2*u}")
                r(f"v_cvt_pk_bf16_f32 v{OUT+2*u+1}, v{XR(1)+u}, v{XI(1)+u}")
                r(f"v_min_u32 v{OUT+2*u}, -2, v{OUT+2*u}\nv_min_u32 v{OUT+2*u+1}, -2, v{OUT+2*u+1}")
            r(f"buffer_store_dwordx4 {vr(OUT+4*v)}, v4, s[8:11], s33 offen offset:{1024*v} {S1F}")
        return r.l
    emit(k, st4(0, 0)); emit(k, st4(1, 0)); emit(k, st4(0, 1))
    emit(k, merge(st4(1, 1), fin(0)))
    emit(k, fin(1))
    stamp(k, 3)

def role_J2(k, first):
    k(f"""s_sub_u32 s23, s98, {first}
s_lshr_b32 s23, s23, 3
s_lshl2_add_u32 s25, s23, s20      ; mt""")
    k(f"""s_sub_u32 s3, s25, 32
s_lshr_b32 s28, s3, 1
s_lshl_b32 s28, s28, 3
s_and_b32 s3, s25, 1
s_add_u32 s28, s28, s3
s_mul_i32 s29, s25, 18
s_cmp_ge_u32 s25, 32
s_cselect_b64 vcc, -1, 0""")
    for rho in range(2):
        k(f"""v_lshrrev_b32 v10, 3, v1
v_add_u32 v10, {8*rho}, v10
v_add_u32 v11, s29, v10
v_lshrrev_b32 v12, 2, v10
v_lshl_add_u32 v12, v12, 1, s28
v_bfe_u32 v13, v10, 1, 1
v_lshl_add_u32 v12, v12, 1, v13
v_mul_u32_u24 v12, 18, v12
v_and_b32 v13, 1, v10
v_add3_u32 v12, v12, v13, 16
v_cndmask_b32 v11, v11, v12, vcc
v_mul_u32_u24 v{5+rho}, 1152, v11""")
    rows_dma_setup(k, 5, 6)
    srd(k, 12, 54, 55, 576*1152)
    stamp(k, 1, 'B')
    def lines(tag, n):
        k(f"""s_mov_b32 s40, {n}
L_{tag}:
s_lshl_b32 s3, s37, 11
s_add_u32 m0, s3, s36
s_lshl_b32 s3, s37, 7
buffer_load_dwordx4 v5, s[12:15], s3 offen lds
s_add_u32 m0, m0, 1024
s_add_u32 s37, s37, 1
buffer_load_dwordx4 v6, s[12:15], s3 offen lds
s_cmp_eq_u32 s37, 9
s_cselect_b32 s37, 0, s37
s_sub_u32 s40, s40, 1
s_cmp_lg_u32 s40, 0
s_cbranch_scc1 L_{tag}""")
    k(f"s_mul_i32 s36, s20, 18432\ns_add_u32 s36, s36, {XO}\ns_mov_b32 s37, s24")
    lines('j2xa', 9)
    rows_read_addr(k, 10, 11)
    k(f"""v_and_b32 v8, 1, v2
v_lshlrev_b32 v8, 4, v8
v_mov_b32 v9, 0x3f80
v_lshlrev_b32 v8, v8, v9
v_lshrrev_b32 v9, 1, v2
v_lshlrev_b32 v12, 1, v3
v_cmp_eq_u32 vcc, v9, v12
v_cndmask_b32 v130, 0, v8, vcc
v_add_u32 v12, 1, v12
v_cmp_eq_u32 vcc, v9, v12
v_cndmask_b32 v131, 0, v8, vcc
v_mov_b32 v128, 0
v_mov_b32 v129, 0
v_mov_b32 v132, 0
v_mov_b32 v133, 0
v_and_b32 v8, 2, v2
v_cmp_eq_u32 vcc, 0, v8
v_mov_b32 v9, -1.0
v_cndmask_b32 v14, v9, 1.0, vcc
s_cmp_eq_u32 s24, 0
s_mov_b32 s36, {fl(SC)}
s_cselect_b32 s3, {fl(1/24)}, s36
v_mov_b32 v12, s36
v_mov_b32 v13, s3
v_cmp_gt_u32 vcc, 2, v2
v_cndmask_b32 v13, v12, v13, vcc
s_lshl_b32 s3, s24, 11
v_add_u32 v6, s3, v10
v_add_u32 v7, s3, v11
s_bitcmp1_b32 s27, 1
s_cselect_b64 vcc, -1, 0
v_cndmask_b32 v15, v10, v11, vcc
s_waitcnt vmcnt(0)""")
    stamp(k, 4, 'B')
    rows_read(k, 10, 11)
    k(f"""ds_read_b128 v[136:139], v6
ds_read_b128 v[140:143], v7
ds_read_b128 v[144:147], v15 offset:{8*2048}
""")
    stamp(k, 2)
    emit(k, sym_gemm(True))
    TR = 148
    for slot in range(4):
        k(f"{MF} {vr(TR+4*slot)}, {vr(136+4*(slot//2))}, {('v[130:133]', 'v[128:131]')[slot % 2]}, 0")
    k(f"{MF} {vr(TR+16)}, v[144:147], v[130:133], 0\n{MF} {vr(TR+20)}, v[144:147], v[128:131], 0")
    H = lambda s_: 16 + 2*s_
    Tt = lambda s_: 26 + 2*s_
    for slot in range(5):
        a = ACC + 8*slot
        for r in range(4): k(f"v_fma_f32 v{a+r}, v{a+4+r}, v14, v{a+r}")
        for r in range(4): k(f"v_mul_f32 v{a+r}, {'v13' if slot == 0 else 'v12'}, v{a+r}")
        k(f"v_cvt_pk_bf16_f32 v{H(slot)}, v{a}, v{a+1}\nv_cvt_pk_bf16_f32 v{H(slot)+1}, v{a+2}, v{a+3}")
    k("s_bitcmp1_b32 s27, 0\ns_cselect_b64 vcc, -1, 0")
    for r in range(4): k(f"v_cndmask_b32 v{TR+16+r}, v{TR+16+r}, v{TR+20+r}, vcc")
    for slot in range(5):
        k(f"v_cvt_pk_bf16_f32 v{Tt(slot)}, v{TR+4*slot}, v{TR+4*slot+1}\nv_cvt_pk_bf16_f32 v{Tt(slot)+1}, v{TR+4*slot+2}, v{TR+4*slot+3}")
    k(f"""s_and_b32 s38, s20, 1
s_lshl_b32 s3, s20, 12
s_add_u32 s3, s3, {136*1024}
v_lshl_add_u32 v5, v1, 3, s3
v_xor_b32 v6, 0x1000, v5
s_cmp_eq_u32 s38, 0
s_cselect_b64 vcc, -1, 0
s_mov_b32 s3, {hex(WOT)}
s_cselect_b32 s39, {hex(WOH)}, s3
s_mul_i32 s3, s24, {90*1024}
s_add_u32 s39, s39, s3
s_lshr_b32 s3, s25, 1
s_lshl_b32 s37, s3, 10
s_add_u32 s37, s37, s39
s_add_u32 s37, s37, {72*1024}
s_lshl_b32 s3, s3, 12
s_add_u32 s39, s39, s3""")
    for slot in range(5):
        for r in range(2):
            k(f"v_cndmask_b32 v{36+2*slot+r}, v{H(slot)+r}, v{Tt(slot)+r}, vcc\nv_cndmask_b32 v{H(slot)+r}, v{Tt(slot)+r}, v{H(slot)+r}, vcc")
        k(f"ds_write_b64 v5, {vr(36+2*slot,2)} offset:{512*slot}")
    k("s_waitcnt lgkmcnt(0)\ns_barrier")
    stamp(k, 7, 'B')
    for slot in range(5): k(f"ds_read_b64 {vr(36+2*slot,2)}, v6 offset:{512*slot}")
    for slot in range(5):
        o = 48 + 4*slot
        for r in range(2):
            k(f"v_cndmask_b32 v{o+r}, v{36+2*slot+r}, v{H(slot)+r}, vcc\nv_cndmask_b32 v{o+2+r}, v{H(slot)+r}, v{36+2*slot+r}, vcc")
        k(f"buffer_store_dwordx4 {vr(o)}, v4, s[8:11], s39 offen offset:{1024*slot} {S1F}" if slot < 4 else f"buffer_store_dwordx4 {vr(o)}, v4, s[8:11], s37 offen {S1F}")

def role_J4(k, first):
    k(f"""s_sub_u32 s21, s98, {first}
s_lshl2_add_u32 s21, s21, s20
s_mul_hi_u32 s22, s21, {hex((1<<32)//3+1)}
s_mul_i32 s3, s22, 3
s_sub_u32 s23, s21, s3
s_mul_i32 s23, s23, 6
s_add_u32 s24, s23, 6
s_lshr_b32 s3, s22, 1
s_lshl_b32 s3, s3, 5
s_and_b32 s25, s22, 1
s_lshl2_add_u32 s3, s25, s3
s_cmp_ge_u32 s22, 18
s_cselect_b32 s25, 576, 0
s_sub_u32 s3, s3, s25
v_lshrrev_b32 v8, 2, v2
v_and_b32 v9, 3, v2
v_lshl_add_u32 v8, v8, 3, v9
v_add_u32 v8, s3, v8
v_cvt_f32_i32 v10, v8
v_mul_f32 v10, {fl(1/576)}, v10
v_lshlrev_b32 v9, 2, v3
v_cvt_f32_u32 v9, v9
v_and_b32 v11, 1, v2
v_lshlrev_b32 v11, 31, v11
v_xor_b32 v11, {fl(1/24)}, v11
v_mov_b32 v12, {fl(1/24)}
v_cvt_pk_bf16_f32 v11, v11, v12
s_mov_b32 s26, {fl(SC)}
s_and_b32 s27, s22, 15
s_mul_i32 s27, s27, 3
s_lshr_b32 s3, s22, 4
s_add_u32 s27, s27, s3
s_mul_i32 s27, s27, 18432
s_add_u32 s27, s27, {hex(GT)}
L_j4_loop:
s_lshl_b32 s3, s23, 4
v_cvt_f32_u32 v13, s3
v_add_f32 v13, v13, v9
v_cmp_eq_f32 vcc, 0, v13
v_mul_f32 v13, v13, v10
v_fract_f32 v13, v13""")
    for q in range(4):
        k(f"""v_fmamk_f32 v14, v10, {fl(float(q))}, v13
v_cos_f32 v15, v14
v_sin_f32 v16, v14
v_mul_f32 v15, s26, v15
v_mul_f32 v16, s26, v16
v_cvt_pk_bf16_f32 v{20+q}, v15, -v16""")
    k(f"""v_cndmask_b32 v20, v20, v11, vcc
s_lshl_b32 s3, s23, 10
s_add_u32 s3, s3, s27
buffer_store_dwordx4 v[20:23], v4, s[8:11], s3 offen {S1F}
s_add_u32 s23, s23, 1
s_cmp_lt_u32 s23, s24
s_cbranch_scc1 L_j4_loop""")
```

```python
import numpy as np
S, D, H, DH = 2048, 576, 32, 18
XH_SZ = 0x240000
import os
TAU_ST = int(os.environ.get('TAU_ST', 18432+256)); JP_ST = int(os.environ.get('JP_ST', 16384+256))
BUF = 0x250000
WT_ST = 8192 + 128
XH0 = 0; WQ = BUF; WT = 2*BUF; XH1 = 3*BUF
O1 = 4*BUF; KVP1 = 5*BUF; PZ1_END = KVP1 + 0x60000
XH2 = 0xC00000; XH3 = XH2 + BUF; O2 = XH2 + 2*BUF; X3T = XH2 + 3*BUF; KVP2 = XH2 + 4*BUF; SS2 = KVP2 + 0x60000; PZ2_END = SS2 + 0x8000
WOH = 0x1600000; WOT = 0x16C0000; GT = 0x1780000; FT = 0x1860000
CNT = 0x18C0000; SS0 = CNT + 0x18000
WS_END = 0x2000000
WQ_HP = 126*1024

def bf(x):
    x = np.ascontiguousarray(x, dtype=np.float32)
    u = x.view(np.uint32)
    r = ((u + 0x7FFF + ((u >> 16) & 1)) & 0xFFFF0000).astype(np.uint32)
    return r.view(np.float32)
def u16f(u):
    return (np.asarray(u).view(np.uint16).astype(np.uint32) << 16).view(np.float32)
def Fmat():
    d = np.arange(D)[:, None]; j = np.arange(288)[None, :]
    F = np.zeros((D, D))
    F[:, 0::2] = np.sqrt(2/D)*np.cos(2*np.pi*d*j/D); F[:, 1::2] = -np.sqrt(2/D)*np.sin(2*np.pi*d*j/D)
    F[:, 0] = (-1.0)**np.arange(D)/24; F[:, 1] = 1/24
    return F
def ts_of(t):
    return (t & 64) | ((t >> 4 & 1) << 5) | ((t >> 1 & 3) << 3) | ((t >> 3 & 1) << 2) | ((t & 1) << 1) | (t >> 5 & 1)
TS = ts_of(np.arange(128))
def untau(a):
    out = np.empty_like(a); out[TS] = a
    return out.reshape((2048,) + a.shape[2:])
def unfrag(buf16):
    a = np.asarray(buf16)[:128*TAU_ST//2].reshape(128, TAU_ST//2)[:, :9216].reshape(128, 18, 4, 16, 8)
    m = a.transpose(0, 3, 1, 2, 4).reshape(128, 16, 576).copy()
    m[:, :, 512:] = a[:, 16:].reshape(128, 16, 16, 4).transpose(0, 2, 1, 3).reshape(128, 16, 64)
    return untau(m)
def uny2(buf16):
    a = np.asarray(buf16)[:144*JP_ST//2].reshape(144, JP_ST//2)[:, :8192].reshape(144, 64, 16, 2, 4)
    return untau(a.transpose(1, 3, 2, 0, 4).reshape(128, 16, 576))
def tile_cols(T):
    i = np.arange(16)
    return 32*(T//2) + 8*(i//4) + 4*(T % 2) + i % 4
def eslot():
    E = np.zeros((18, 4, 8), dtype=int)
    for k in range(18):
        for g in range(4):
            for u in range(8):
                if k < 16: E[k, g, u] = 18*(2*k + u//4) + 4*g + u % 4
                else:
                    hp = 8*(k-16) + 2*g + u//4; r = u % 4
                    E[k, g, u] = 18*(2*hp + r//2) + 16 + r % 2
    return E
def wq_cols(hp):
    C = -np.ones((7, 16), dtype=int)
    for hl in range(2):
        h = 2*hp + hl
        C[hl] = 576 + 18*h + np.arange(16); C[2+hl] = 1152 + 18*h + np.arange(16); C[5+hl] = 18*h + np.arange(16)
        for x in range(2):
            C[4, 4*hl + x] = 1152 + 18*h + 16 + x
            C[4, 8 + 4*hl + x] = 576 + 18*h + 16 + x
            C[4, 10 + 4*hl + x] = 18*h + 16 + x
    return C
```

```python
from gen4b import *

def phi2(k, dst, acc, rs2, t, bcast=False):
    m = f"{vr(rs2,2)} op_sel_hi:[1,0]" if bcast else vr(rs2, 2)
    k(f"""v_pk_mul_f32 {vr(dst,2)}, {vr(acc,2)}, {m}
v_exp_f32_e64 v{t}, v{dst} clamp
v_exp_f32_e64 v{t+1}, v{dst+1} clamp
v_max_f32 v{dst}, s58, v{dst}
v_max_f32 v{dst+1}, s58, v{dst+1}
v_pk_fma_f32 {vr(dst,2)}, {vr(dst,2)}, s[56:57], {vr(t,2)}""")

def lds_rd(dst, o, va=('v4', 'v5')):
    return f"ds_read_b128 {dst}, {va[0]} offset:{o}" if o < 65536 else f"ds_read_b128 {dst}, {va[1]} offset:{o-65536}"

P3D = int(os.environ.get('P3D', 6))
GK0 = int(os.environ.get('GK0', 10))
PZK = (2, 4, 6, 8, 10, 12, 13, 14, 15, 16)
DA1 = int(os.environ.get('DA1', 10))
def phase_P3(k):
    A = lambda mt, kp: 16 + 8*kp + 4*mt
    AC = lambda t, mt: 160 + 8*t + 4*mt
    RS, RS2 = 208, 216
    TMP = 224; PKD = 232
    RL2 = 252
    FIN = L_FIN
    p3_map(k)
    k(f"""s_cmp_eq_u32 s45, 0
s_mov_b32 s40, {hex(XH1)}
s_mov_b32 s3, {hex(XH3)}
s_cselect_b32 s40, s40, s3
s_mov_b32 s41, {hex(O1)}
s_mov_b32 s3, {hex(O2)}
s_cselect_b32 s41, s41, s3
s_mov_b32 s42, {hex(KVP1)}
s_mov_b32 s3, {hex(KVP2)}
s_cselect_b32 s42, s42, s3
s_mul_i32 s25, s24, {2*TAU_ST}
s_lshl_b32 s31, s24, 8
s_add_u32 s26, s31, s40
s_add_u32 s27, s26, {JP_ST}
v_add_u32 v5, 0x10000, v4
v_mul_u32_u24 v6, {2*JP_ST}, v3
v_lshl_add_u32 v6, v2, 4, v6
v_cmp_eq_u32 vcc, 0, v3
v_mov_b32 v10, 0xffff
v_cndmask_b32 v10, -1, v10, vcc
s_mov_b32 s56, {fl(LN2)}
s_mov_b32 s57, {fl(LN2)}
s_mov_b32 s58, {fl(1e-6/LN2)}
""")
    k(f"""s_mov_b32 s16, s8
s_mov_b32 s17, s9
s_cmp_eq_u32 s45, 0
s_cselect_b32 s18, {hex(PZ2_END)}, 0
s_mov_b32 s19, 0x20000
s_lshl2_add_u32 s28, s2, s20
s_mul_i32 s28, s28, 10240
s_add_u32 s28, s28, {hex(XH2)}
v_mov_b32 v{PKD}, -1
v_mov_b32 v{PKD+1}, -1
v_mov_b32 v{PKD+2}, -1
v_mov_b32 v{PKD+3}, -1
s_cmp_lt_u32 s98, 144
s_cbranch_scc1 L_p3_gok
v_mov_b32 v9, 0
s_mov_b32 s34, 0
s_mov_b64 exec, 1
L_p3_gate:""")
    k.optional(True)
    k("buffer_load_dword v7, v9, s[8:11], s26 offen sc1\ns_waitcnt vmcnt(0)")
    k.optional(False)
    k(f"""v_cmp_eq_u32 vcc, -1, v7
s_add_u32 s34, s34, 1
s_cmp_gt_u32 s34, {SPIN}
s_cbranch_scc1 L_p3_gx
s_cbranch_vccnz L_p3_gate
L_p3_gx:
s_mov_b64 exec, -1
L_p3_gok:
s_mov_b32 s59, 0""")
    WB = lambda kp, t: ar(20*(kp % 2) + 4*t)
    wrd = lambda kp: [lds_rd(WB(kp, t), (4*kp + t)*1024) for t in range(4)] + [lds_rd(WB(kp, 4), L_LT + kp*1024)]
    stamp(k, 5)
    def loads(kp):
        if kp >= 18: return []
        return [f"buffer_load_dwordx4 {vr(A(0,kp))}, v6, s[8:11], s26 offen {S1F}\ns_add_u32 s26, s26, {8*JP_ST}",
                f"buffer_load_dwordx4 {vr(A(1,kp))}, v6, s[8:11], s27 offen {S1F}\ns_add_u32 s27, s27, {8*JP_ST}"]
    for kp in range(P3D): emit(k, loads(kp))
    k(f"s_waitcnt vmcnt({2*P3D})\ns_barrier")
    emit(k, wrd(0))
    def swp(kp):
        r = Rec(); scan(r, 8, range(A(0,kp), A(0,kp)+8))
        r(f"v_cmp_eq_u32 vcc, -1, v8"); r.l.append(f"s_cbranch_vccnz L_p3_f{kp}\nL_p3_o{kp}:")
        r(f"v_swap_b32 v{A(0,kp)+2}, v{A(0,kp)+4}\nv_swap_b32 v{A(0,kp)+3}, v{A(0,kp)+5}")
        return r.l
    def stubs(k):
        for kp in range(18):
            hi = min(18, kp + P3D)
            k(f"""L_p3_f{kp}:
s_add_u32 s59, s59, 1
s_cmp_gt_u32 s59, {SPIN}
s_cbranch_scc1 L_p3_o{kp}
s_sub_u32 s26, s26, {(hi-kp)*8*JP_ST}
s_sub_u32 s27, s27, {(hi-kp)*8*JP_ST}
s_waitcnt vmcnt(0)""")
            for q in range(kp, hi): emit(k, loads(q))
            k("s_waitcnt vmcnt(0)"); scan(k, 8, range(A(0,kp), A(0,kp)+8))
            k(f"v_cmp_eq_u32 vcc, -1, v8\ns_cbranch_vccnz L_p3_f{kp}\ns_branch L_p3_o{kp}")
    global p3_stubs
    p3_stubs = stubs
    emit(k, swp(0))
    for mt in range(2):
        b = TMP + 4*mt
        k(f"v_and_b32 v{b}, v10, v{A(mt,0)}\nv_mov_b32 v{b+1}, v{A(mt,0)+1}\nv_mov_b32 v{b+2}, v{A(mt,0)+2}\nv_mov_b32 v{b+3}, v{A(mt,0)+3}")
    k(f"""s_lshr_b32 s3, s2, 5
v_lshl_add_u32 v9, v1, 3, s3
v_min_u32 v7, 35, v1
v_add_u32 v7, 63, v7
v_cmp_gt_u32 vcc, 9, v1
v_cndmask_b32 v9, v7, v9, vcc
v_lshlrev_b32 v9, 7, v9
s_mov_b32 s36, {hex(F_J)}""")
    for kp in range(18):
        m = []
        for t in range(5):
            for mt in range(2):
                m.append(f"{MF} {vr(AC(t,mt))}, {vr(A(mt,kp))}, {WB(kp,t)}, {'0' if kp == 0 else vr(AC(t,mt))}")
        for mt in range(2):
            x = vr(A(mt, kp)) if kp else vr(TMP + 4*mt)
            m.append(f"{MF} {vr(AC(5,mt))}, {x}, {x}, {'0' if kp == 0 else vr(AC(5,mt))}")
        side = wrd(kp+1) if kp + 1 < 18 else []
        ld = loads(kp + P3D)
        if kp % 2 == 1: ld = ld + q_dma()
        if kp in PZK: ld = ld + [f"buffer_store_dwordx4 {vr(PKD)}, v4, s[16:19], s28 offen sc1\ns_add_u32 s28, s28, 1024"]
        if kp == 11: ld = ld + [sample('p3j', 7, 9, 36)]
        side = merge(side, ld) if side else ld
        sw = swp(kp+1) if kp + 1 < 18 else []
        emit(k, merge(m[:8], side) + merge(m[8:], sw, ratio=3))
    stamp(k, 6)
    count(k, 2, 59)
    k("""v_and_b32 v13, 3, v2
v_cmp_eq_u32 s[46:47], 1, v13
v_cmp_eq_u32 s[48:49], 2, v13
v_cmp_eq_u32 s[50:51], 3, v13
v_lshrrev_b32 v12, 2, v2
v_cmp_eq_u32 s[52:53], v12, v3
v_mov_b32 v11, 1.0""")
    k(f"s_mov_b32 s32, {fl(1/576)}\nv_mov_b32 v12, {fl(1e-5)}\nv_mov_b32 v13, {fl(LOG2E)}")
    for mt in range(2):
        g = AC(5, mt)
        k(f"""v_cndmask_b32 v{14+mt}, v{g}, v{g+1}, s[46:47]
v_cndmask_b32 v{14+mt}, v{14+mt}, v{g+2}, s[48:49]
v_cndmask_b32 v{14+mt}, v{14+mt}, v{g+3}, s[50:51]
v_fma_f32 v{14+mt}, v{14+mt}, s32, v12
v_rsq_f32 v{14+mt}, v{14+mt}
v_cndmask_b32 v{14+mt}, 0, v{14+mt}, s[52:53]""")
    for mt in range(2): k(f"v_mfma_f32_16x16x4_f32 {vr(RS+4*mt)}, v{14+mt}, v11, 0")
    for mt in range(2): k(f"v_mfma_f32_16x16x4_f32 {vr(RS2+4*mt)}, v{14+mt}, v13, 0")
    for mt in range(2): k(f"v_mfma_f32_16x16x4_f32 {vr(TMP+4*mt)}, v13, v{14+mt}, 0")
    k(f"""v_cmp_lt_u32 s[46:47], 7, v2
v_cmp_gt_u32 s[48:49], 4, v2
v_and_b32 v13, 10, v2
v_cmp_eq_u32 s[50:51], 2, v13
v_cmp_eq_u32 s[52:53], 2, v3
v_cmp_eq_u32 s[54:55], 3, v3
s_mov_b32 s34, 0
s_cmp_lg_u32 s20, 0
s_cbranch_scc1 L_p3_jok
L_p3_jchk:
v_cmp_ne_u32 vcc, 1, v7
s_cbranch_vccz L_p3_jok
s_add_u32 s34, s34, 1
s_cmp_gt_u32 s34, {SPIN}
s_cbranch_scc1 L_p3_jok""")
    k.optional(True)
    k(f"buffer_load_dword v7, v9, s[8:11], s36 offen {S1F}\ns_waitcnt vmcnt(0)")
    k.optional(False)
    k(f"""s_branch L_p3_jchk
L_p3_jok:
s_lshr_b32 s3, s2, 5
s_mul_i32 s61, s3, {90*1024}
s_lshl_b32 s3, s20, 10
s_add_u32 s61, s61, s3
s_mov_b32 m0, s3
s_mul_i32 s62, s23, {54*1024}
s_add_u32 s62, s62, s3
s_add_u32 s62, s62, {hex(GT)}
s_add_u32 s63, s3, {L_Q}
s_cmp_eq_u32 s45, 0
s_mov_b32 s3, {hex(WOT)}
s_cselect_b32 s3, {hex(WOH)}, s3
s_cselect_b32 s18, 0, s10
s_add_u32 s61, s61, s3""")
    da = [f"buffer_load_dwordx4 v4, s[8:11], s61 offen sc1 lds\ns_add_u32 s61, s61, 4096\ns_add_u32 m0, m0, 4096" for m in range(23)]
    for mt in range(2): k(f"v_mov_b32 v{RL2+2*mt}, v{TMP+4*mt}")
    for t in (2, 0, 4, 3, 1):
        for q in range(4):
            a = AC(t, 0) + 2*q
            if t < 2: phi2(k, a, a, RS2+2*q, TMP + 2*(q % 2))
            elif t < 4: k(f"v_pk_mul_f32 {vr(a,2)}, {vr(a,2)}, {vr(RS+2*q,2)}")
            else:
                phi2(k, TMP+4, a, RS2+2*q, TMP + 2*(q % 2))
                k(f"v_pk_mul_f32 {vr(a,2)}, {vr(a,2)}, {vr(RS+2*q,2)}")
                for h in range(2):
                    k(f"v_cndmask_b32 v{a+h}, v{a+h}, v{TMP+4+h}, s[46:47]\nv_cndmask_b32 v{a+h}, v{a+h}, 1.0, s[50:51]")
            k(f"v_cvt_pk_bf16_f32 v{PKD+4*t+q}, v{a}, v{a+1}")
    P = lambda t: vr(PKD+4*t)
    T00, T11, T0L, T1L, TL0, TL1, TLL = [160 + 4*i for i in range(7)]
    for d, a, b in ((T00,0,2), (T0L,0,4), (TL0,4,2), (TLL,4,4), (TL1,4,3), (T1L,1,4), (T11,1,3)):
        k(f"{MF} {vr(d)}, {P(a)}, {P(b)}, 0")
    k(f"""s_lshl_b32 s3, s20, 12
s_add_u32 s3, s3, {L_RED}
v_add_u32 v7, s3, v4
s_lshl_b32 s3, s20, 10
v_add_u32 v14, s3, v4
v_lshrrev_b32 v15, 3, v1
v_and_b32 v13, 7, v1
v_lshl_add_u32 v15, v15, 4, v13
v_lshlrev_b32 v15, 4, v15
v_add_u32 v15, 0x800, v15
v_add_u32 v13, 0xc00, v4
v_cmp_gt_u32 vcc, 32, v1
v_cndmask_b32 v15, v13, v15, vcc
s_cmp_eq_u32 s20, 2
s_cselect_b64 vcc, -1, 0
v_cndmask_b32 v14, v14, v15, vcc
v_add_u32 v14, {L_RED}, v14
ds_write_b128 v7, {vr(T00)}
v_cndmask_b32 v{TL0}, v{TL1}, v{TL0}, s[52:53]
v_cndmask_b32 v{TL0+1}, v{TL1+1}, v{TL0+1}, s[52:53]
v_mov_b32 v{TL0+2}, v{TLL}
v_mov_b32 v{TL0+3}, v{TLL+1}
ds_write_b128 v7, {vr(TL0)} offset:3072""")
    for r in range(4): k(f"v_cndmask_b32 v{T0L+r}, v{T1L+r}, v{T0L+r}, s[48:49]")
    k(f"""ds_write_b128 v7, {vr(T0L)} offset:2048
ds_write_b128 v7, {vr(T11)} offset:1024
s_min_u32 s3, s20, 2
s_mul_i32 s29, s23, 3
s_add_u32 s29, s29, s3
s_lshl_b32 s29, s29, 13
s_add_u32 s29, s29, s42
s_lshl_b32 s3, s22, 9
s_add_u32 s30, s29, s3
s_add_u32 s35, s29, 4096
v_lshrrev_b32 v15, 1, v3
v_lshl_add_u32 v15, v15, 4, v2
v_lshlrev_b32 v15, 4, v15
s_waitcnt vmcnt(0) lgkmcnt(0)
s_barrier
s_cmp_eq_u32 s20, 3
s_cbranch_scc1 L_p3_nopub""")
    k.optional(True)
    for c_ in range(4): k(f"ds_read_b128 {vr(184+4*c_)}, v14 offset:{4096*c_}")
    for r in range(0, 4, 2):
        k(f"v_pk_add_f32 {vr(184+r,2)}, {vr(184+r,2)}, {vr(188+r,2)}\nv_pk_add_f32 {vr(192+r,2)}, {vr(192+r,2)}, {vr(196+r,2)}\nv_pk_add_f32 {vr(184+r,2)}, {vr(184+r,2)}, {vr(192+r,2)}")
    k(f"v_cvt_pk_bf16_f32 v184, v184, v185\nv_cvt_pk_bf16_f32 v185, v186, v187\nv_mov_b32 v186, v184\nv_mov_b32 v187, v185\nv_permlane16_swap_b32 v184, v186\nv_permlane16_swap_b32 v185, v187\ns_mov_b32 exec_lo, 0xffff\ns_mov_b32 exec_hi, 0xffff\nbuffer_store_dwordx4 v[184:187], v15, s[8:11], s30 offen sc1\ns_mov_b64 exec, -1")
    k.optional(False)
    k("L_p3_nopub:")
    stamp(k, 7)
    QW = lambda kp, t: ar(8*(kp % 4) + 4*t)
    qrd = lambda kp: [lds_rd(QW(kp, t), L_Q + 2048*kp + 1024*t) for t in range(2)]
    GD = lambda c_: 188 + 4*c_
    gl = [f"buffer_load_dwordx4 {vr(GD(c_))}, v4, s[8:11], s{(29,35)[c_//4]} offen offset:{1024*(c_%4)} sc1" for c_ in range(8)]
    SEL = 220; GS = 224; BQ = lambda mt: 232 + 6*mt
    emit(k, qrd(0)); emit(k, qrd(1)); emit(k, qrd(2))
    sv = Rec()
    sv(f"""v_and_b32 v13, 1, v2
v_lshlrev_b32 v13, 4, v13
v_mov_b32 v12, 0x3f80
v_lshlrev_b32 v13, v13, v12
v_lshrrev_b32 v12, 1, v2
v_lshlrev_b32 v15, 1, v3
v_cmp_eq_u32 vcc, v12, v15
v_cndmask_b32 v178, 0, v13, vcc
v_add_u32 v15, 1, v15
v_cmp_eq_u32 vcc, v12, v15
v_cndmask_b32 v179, 0, v13, vcc
v_mov_b32 v176, 0
v_mov_b32 v177, 0
v_mov_b32 v180, 0
v_mov_b32 v181, 0
{MF} v[224:227], {P(4)}, v[178:181], 0
{MF} v[228:231], {P(4)}, v[176:179], 0
v_and_b32 v15, 1, v3
v_lshlrev_b32 v15, 2, v15""")
    for q in range(4): sv(f"v_cmp_eq_u32 vcc, v12, v15\nv_cndmask_b32 v{SEL+q}, 0, v13, vcc\nv_add_u32 v15, 1, v15")
    for mt in range(2): sv(f"v_cvt_pk_bf16_f32 v{BQ(mt)+2}, v{226+4*mt}, v{227+4*mt}\nv_mov_b32 v{BQ(mt)+3}, 0")
    body = []
    for kp in range(18):
        m = [f"{MF} {vr(AC(t,mt))}, {QW(kp,t)}, {vr(A(mt,kp))}, {'0' if kp == 0 else vr(AC(t,mt))}" for t in range(2) for mt in range(2)]
        side = qrd(kp+3) if kp + 3 < 18 else []
        vm = da[kp:kp+1] if kp < DA1 else []
        if kp >= GK0: vm = vm + gl[(kp-GK0)*8//(18-GK0):(kp+1-GK0)*8//(18-GK0)]
        body += merge(m, merge(side, vm) if side else vm)
    h = len(body)//2
    emit(k, merge(body[:h], sv.l) + body[h:])
    k("s_barrier\ns_mov_b32 s43, m0\ns_mov_b32 m0, s63")
    stamp(k, 8)
    dg = [f"buffer_load_dwordx4 v4, s[16:19], s62 offen sc1 lds\ns_add_u32 s62, s62, 4096\ns_add_u32 m0, m0, 4096" for m in range(14)]
    qe = Rec()
    for mt in range(2):
        for t in range(2):
            for q in range(2):
                a = AC(t, mt) + 2*q
                phi2(qe, a, a, RL2+2*mt, 228 + 2*q, bcast=True)
                qe(f"v_cvt_pk_bf16_f32 v{BQ(mt) + 4*t + q}, v{a}, v{a+1}")
    emit(k, merge(qe.l, dg[:5]))
    k("s_mov_b32 s34, 0\ns_waitcnt vmcnt(5)\ns_branch L_p3_check\nL_p3_poll:")
    emit(k, gl)
    k(f"s_waitcnt vmcnt(0)\nL_p3_check:")
    for c_ in range(8): k(f"{MF} {vr(GS)}, {vr(SEL)}, {vr(GD(c_))}, {'0' if c_ == 0 else vr(GS)}")
    k(f"""s_add_u32 s34, s34, 1
v_cmp_u_f32 vcc, v{GS}, v{GS}
s_cmp_gt_u32 s34, {SPIN}
s_cbranch_scc1 L_p3_polled
s_cbranch_vccnz L_p3_poll
L_p3_polled:""")
    count(k, 3, 34)
    AL0, AL1, BE0, BE1 = 188, 192, 196, 200
    k(f"""v_cvt_pk_bf16_f32 v228, v{GS}, v{GS+1}
v_cvt_pk_bf16_f32 v229, v{GS+2}, v{GS+3}
s_lshl_b32 s3, s20, 9
s_add_u32 s3, s3, {FIN}
v_lshl_add_u32 v13, v1, 3, s3
ds_write_b64 v13, v[228:229]""")
    stamp(k, 9)
    fa = Rec()
    fa(f"""v_lshlrev_b32 v13, 3, v1
v_add_u32 v13, {FIN}, v13
v_and_b32 v14, 3, v2
v_lshl_add_u32 v15, v3, 4, v14
v_lshl_add_u32 v14, v3, 3, v14
v_lshlrev_b32 v14, 3, v14
v_add_u32 v14, {FIN}, v14
v_lshlrev_b32 v15, 3, v15
v_add_u32 v15, {FIN}, v15
v_mov_b32 v{AL0+3}, 0
v_mov_b32 v{AL1+1}, 0
v_mov_b32 v{BE0+3}, 0
v_mov_b32 v{BE1+1}, 0
s_lshl_b32 s3, s23, 10
s_add_u32 s36, s25, s41
s_add_u32 s34, s36, s3
s_lshl_b32 s3, s23, 7
s_add_u32 s36, s36, s3
s_add_u32 s36, s36, 16384
s_add_u32 s35, s34, {TAU_ST}
v_mul_u32_u24 v11, {TAU_ST}, v3
v_lshl_add_u32 v11, v2, 3, v11
v_cmp_eq_u32 s[46:47], 0, v3
v_mov_b32 v12, {fl(1e-6)}""")
    emit(k, merge(fa.l, dg[5:7]))
    k(f"""s_waitcnt lgkmcnt(0)
s_barrier
ds_read_b32 v9, v15 offset:1028
ds_read_b32 v10, v15 offset:1060
ds_read_b64 v[{BE0}:{BE0+1}], v14 offset:1024
ds_read_b64 v[{BE1+2}:{BE1+3}], v14 offset:1056
ds_read_b32 v8, v13 offset:1024
ds_read_b64 v[{AL0}:{AL0+1}], v13
ds_read_b64 v[{AL1+2}:{AL1+3}], v13 offset:512""")
    emit(k, dg[7:8])
    k(f"""v_cndmask_b32 v{BE0+2}, 0, v9, s[52:53]
v_cndmask_b32 v{BE1}, 0, v10, s[54:55]
v_cndmask_b32 v{AL0+2}, 0, v8, s[52:53]
v_cndmask_b32 v{AL1}, 0, v8, s[54:55]""")
    D = lambda mt, x: (160, 204)[mt] + 4*x
    for mt in range(2):
        b0, b1 = vr(BQ(mt)), vr(BQ(mt)+2)
        k(f"{MF} {vr(D(mt,2))}, {vr(BE0)}, {b0}, 0\n{MF} {vr(D(mt,3))}, {vr(BE1)}, {b1}, 0")
    for mt in range(2):
        b0, b1 = vr(BQ(mt)), vr(BQ(mt)+2)
        k(f"{MF} {vr(D(mt,0))}, {vr(AL0)}, {b0}, 0\n{MF} {vr(D(mt,1))}, {vr(AL1)}, {b1}, 0")
    emit(k, dg[8:9])
    for mt in range(2):
        for h in range(2):
            rd = D(mt, 2+h) + 3
            k(f"v_add_f32 v{rd}, v{rd}, v12\nv_rcp_f32 v{rd}, v{rd}")
    for mt in range(2):
        O = 176 + 6*mt
        for h in range(2):
            rd = D(mt, 2+h) + 3
            for r in range(4): k(f"v_mul_f32 v{D(mt,h)+r}, v{D(mt,h)+r}, v{rd}")
            k(f"v_cvt_pk_bf16_f32 v{O+2*h}, v{D(mt,h)}, v{D(mt,h)+1}\nv_cvt_pk_bf16_f32 v{O+2*h+1}, v{D(mt,h)+2}, v{D(mt,h)+3}")
        for r in range(4): k(f"v_min_u32 v{O+r}, -2, v{O+r}")
        k(f"buffer_store_dwordx4 {vr(O)}, v4, s[8:11], s{34+mt} offen sc1")
    for mt in range(2):
        O = 176 + 6*mt
        for h in range(2):
            rd = D(mt, 2+h) + 3
            for r in range(2): k(f"v_mul_f32 v{D(mt,2+h)+r}, v{D(mt,2+h)+r}, v{rd}")
            k(f"v_cvt_pk_bf16_f32 v{O+4+h}, v{D(mt,2+h)}, v{D(mt,2+h)+1}")
    k(f"""v_cndmask_b32 v180, v186, v180, s[46:47]
v_cndmask_b32 v181, v187, v181, s[46:47]
v_min_u32 v180, -2, v180
v_min_u32 v181, -2, v181
s_mov_b32 exec_hi, 0
buffer_store_dwordx2 v[180:181], v11, s[8:11], s36 offen sc1
s_mov_b32 exec_hi, -1""")
    stamp(k, 10)
    def rest_da(tag):
        return da[DA1:22] + [f"s_cmp_ge_u32 s20, 2\ns_cbranch_scc1 L_{tag}\n{da[22]}\nL_{tag}:"]
    k("s_cmp_lg_u32 s45, 0\ns_cbranch_scc1 L_p3_g\ns_mov_b32 m0, s43")
    k.optional(True); emit(k, rest_da('p3r0')); k.optional(False)
    k(f"""s_branch L_p3_nog
L_p3_g:
s_cmp_ge_u32 s23, 4
s_cbranch_scc1 L_p3_g2""")
    k.optional(True); emit(k, dg[9:14]); k("s_waitcnt vmcnt(8)"); k.optional(False)
    k(f"""s_branch L_p3_g3
L_p3_g2:
s_waitcnt vmcnt(3)
L_p3_g3:
s_barrier
s_mov_b32 m0, s43
s_mov_b32 s38, s23
v_add_u32 v14, {L_Q}, v4""")
    GW = lambda kp: ar(4*(kp % 6))
    def gtile(extra):
        r = [f"ds_read_b128 {GW(kp)}, v14 offset:{1024*kp}" for kp in range(5)]
        b_ = []
        for kp in range(18):
            for mt in range(2):
                b_.append(f"{MF} {vr(160+4*mt)}, {GW(kp)}, {vr(A(mt,kp))}, {'0' if kp == 0 else vr(160+4*mt)}")
                if mt == 0 and kp + 5 < 18: b_.append(f"ds_read_b128 {GW(kp+5)}, v14 offset:{1024*(kp+5)}")
        r += merge(b_, extra)
        r.append(f"""s_lshr_b32 s39, s38, 1
s_lshl_b32 s39, s39, 3
s_and_b32 s3, s38, 1
s_add_u32 s39, s39, s3
s_mul_i32 s39, s39, {JP_ST}
s_add_u32 s39, s39, s31
s_add_u32 s39, s39, {hex(X3T)}
v_add_u32 v14, {18*1024}, v14
s_add_u32 s38, s38, 16""")
        for q in range(4): r.append(f"v_cvt_pk_bf16_f32 v{168+q}, v{160+2*q}, v{161+2*q}\nv_min_u32 v{168+q}, -2, v{168+q}")
        r.append("buffer_store_dwordx4 v[168:171], v6, s[8:11], s39 offen sc1")
        return r
    k.optional(True)
    rd_ = rest_da('p3r1'); h = len(rd_)//2
    emit(k, gtile(rd_[:h])); emit(k, gtile(rd_[h:]))
    k(f"s_cmp_ge_u32 s23, 4\ns_cbranch_scc1 L_p3_nog\ns_waitcnt vmcnt({len(rd_)+1})\ns_barrier")
    emit(k, gtile([]))
    k.optional(False)
    k("L_p3_nog:")

P4D = int(os.environ.get('P4D', 8))
def phase_P4(k):
    rbcb(k)
    k(f"""s_cmp_eq_u32 s45, 0
s_mov_b32 s40, {hex(O1)}
s_mov_b32 s3, {hex(O2)}
s_cselect_b32 s40, s40, s3
s_mov_b32 s41, {hex(XH1)}
s_mov_b32 s3, {hex(X3T)}
s_cselect_b32 s41, s41, s3
s_mul_i32 s28, s25, {TAU_ST}
s_add_u32 s28, s28, s40
v_add_u32 v5, 0x10000, v4
v_lshlrev_b32 v10, 8, v3
v_lshl_add_u32 v10, v2, 3, v10
v_mul_u32_u24 v6, {2*JP_ST}, v3
v_lshl_add_u32 v6, v2, 4, v6
s_lshr_b32 s30, s25, 1
s_lshl_b32 s30, s30, 8
s_and_b32 s3, s25, 1
s_lshl3_add_u32 s30, s3, s30
s_add_u32 s30, s30, s41
s_mul_i32 s31, s24, {16*JP_ST}
s_add_u32 s31, s31, s30
s_lshr_b32 s3, s27, 1
s_lshl_b32 s3, s3, 3
s_and_b32 s32, s27, 1
s_add_u32 s3, s3, s32
s_mul_i32 s3, s3, {JP_ST}
s_add_u32 s30, s30, s3
s_add_u32 s29, s28, 4096
s_add_u32 s33, s28, 8192
s_add_u32 s35, s28, 12288
s_add_u32 s36, s28, 16384
s_mov_b32 s59, 0""")
    stamp(k, 11)
    RES = 108
    def loads(kp):
        if kp in (16, 17):
            return [f"buffer_load_dwordx2 {vr(XB+4*kp+2*h,2)}, v10, s[8:11], s36 offen offset:{(kp-16)*1024 + 128*h} sc1" for h in range(2)]
        if kp < 18:
            return [f"buffer_load_dwordx4 {vr(XB+4*kp)}, v4, s[8:11], s{(28,29,33,35)[kp//4]} offen offset:{(kp % 4)*1024} sc1"]
        slot = kp - 18
        if slot < 4: return [f"s_add_u32 s3, s31, {(8*(slot//2) + slot % 2)*JP_ST}\nbuffer_load_dwordx2 {vr(RES+2*slot,2)}, v6, s[8:11], s3 offen sc1"]
        if slot == 4: return [f"buffer_load_dwordx2 {vr(RES+8,2)}, v6, s[8:11], s30 offen sc1"]
        return []
    WB = lambda kp, t: ar(20*(kp % 2) + 4*t)
    wrd = lambda kp: [lds_rd(WB(kp, t), (4*kp + t)*1024) for t in range(4)] + [lds_rd(WB(kp,4), L_LT + kp*1024)]
    for kp in range(P4D): emit(k, loads(kp))
    k(f"s_waitcnt vmcnt({P4D})\ns_barrier")
    emit(k, wrd(0))
    def chk(kp):
        r = Rec(); r(f"L_p4_c{kp}:"); scan(r, 11, range(XB+4*kp, XB+4*kp+8))
        r(f"v_cmp_eq_u32 vcc, -1, v11\ns_cbranch_vccnz L_p4_f{kp}\nL_p4_o{kp}:")
        return r.l
    emit(k, chk(0))
    for kp in range(18):
        m = [f"{MF} {vr(ACC+4*t)}, {WB(kp,t)}, {vr(XB+4*kp)}, {'0' if kp == 0 else vr(ACC+4*t)}" for t in range(5)]
        side = wrd(kp+1) if kp + 1 < 18 else []
        ld = loads(kp + P4D)
        seq = merge(m, merge(side, ld) if side else ld)
        if kp % 2 == 1 and kp + 1 < 18: seq = seq + chk(kp+1)
        emit(k, seq)
    for kp in range(18 + P4D, 23): emit(k, loads(kp))
    stamp(k, 12)
    count(k, 4, 59)
    k(f"s_mov_b32 s34, 0\nL_p4_rchk:")
    scan(k, 11, range(RES, RES+10))
    k(f"v_cmp_eq_u32 vcc, -1, v11\ns_cbranch_vccnz L_p4_rre\nL_p4_rok:")
    k(f"""s_cmp_eq_u32 s24, 0
s_cselect_b32 s3, 0, 1.0
v_mov_b32 v9, s3
v_cmp_eq_u32 vcc, 0, v3
v_cndmask_b32 v9, 1.0, v9, vcc""")
    PKR = lambda s_: RES + 2*s_
    for slot in range(5):
        a = ACC + 4*slot; E = 120
        for q in range(2):
            k(f"v_lshlrev_b32 v{E+2*q}, 16, v{RES+2*slot+q}\nv_and_b32 v{E+2*q+1}, 0xffff0000, v{RES+2*slot+q}")
        for r in range(0, 4, 2): k(f"v_pk_add_f32 {vr(a+r,2)}, {vr(a+r,2)}, {vr(E+r,2)}")
        k(f"v_cvt_pk_bf16_f32 v{PKR(slot)}, v{a}, v{a+1}\nv_cvt_pk_bf16_f32 v{PKR(slot)+1}, v{a+2}, v{a+3}")
    k("s_cmp_lg_u32 s45, 0\ns_cbranch_scc1 L_p4_final")
    for r in range(10): k(f"v_min_u32 v{RES+r}, -2, v{RES+r}")
    sumsq(k, 'p4', lambda s_: ACC+4*s_, 9)
    k(f"s_mov_b32 s44, {hex(XH2)}")
    y2_exchange_store(k, 'p4', 44, SS2, L_EX, S1F, PKR, 8, san=True)
    prof_dump(k)
    if PROF: prof_init(k, 3)
    k("s_mov_b32 s45, 1\ns_branch L_kp_layer\nL_p4_final:")
    srd(k, 12, 6, 7, XH_SZ)
    tau_to_ts(k, 25, 26)
    k(f"""s_mul_i32 s26, s26, 18432
v_mul_u32_u24 v7, 1152, v2
v_lshl_add_u32 v7, v3, 4, v7
s_lshl_b32 s3, s24, 7
s_add_u32 s39, s26, s3
buffer_store_dwordx4 {vr(RES)}, v7, s[12:15], s39 offen
buffer_store_dwordx4 {vr(RES+4)}, v7, s[12:15], s39 offen offset:64
s_cmp_eq_u32 s21, 0
s_cbranch_scc1 L_p4_end
s_lshr_b32 s3, s27, 1
s_lshl_b32 s3, s3, 6
s_add_u32 s26, s26, s3
s_and_b32 s3, s27, 1
s_lshl3_add_u32 s26, s3, s26
buffer_store_dwordx2 {vr(RES+8,2)}, v7, s[12:15], s26 offen
L_p4_end:""")
    endpgm(k)
    for kp in range(0, 18, 2):
        k(f"L_p4_f{kp}:\ns_add_u32 s59, s59, 1\ns_cmp_gt_u32 s59, {SPIN}\ns_cbranch_scc1 L_p4_o{kp}\ns_waitcnt vmcnt(0)")
        for q in range(kp, min(18, kp + P4D)): emit(k, loads(q))
        k(f"s_waitcnt vmcnt(0)\ns_branch L_p4_c{kp}")
    k(f"L_p4_rre:\ns_add_u32 s34, s34, 1\ns_cmp_gt_u32 s34, {SPIN}\ns_cbranch_scc1 L_p4_rok")
    for kp in range(18, 23): emit(k, loads(kp))
    k("s_waitcnt vmcnt(0)\ns_branch L_p4_rchk")
    p3_stubs(k)

T1G = int(os.environ.get('T1G', 5))
def phase_P1(k):
    V2 = 232
    pA, pB, prd, pC = p2_consts(85*1024)
    rbcb(k)
    tau_to_ts(k, 25, 26)
    k(f"""s_mul_i32 s26, s26, 18432
s_mul_i32 s36, s20, 18432
s_add_u32 s36, s36, {XO}
s_mov_b32 s37, s24
v_lshrrev_b32 v5, 3, v1
v_mul_u32_u24 v5, 1152, v5
v_add_u32 v6, {8*1152}, v5""")
    rows_dma_setup(k, 5, 6)
    pz0 = [f"buffer_store_dwordx4 v[200:203], v4, s[8:11], s46 offen offset:{o} sc1" for o in (0, 1024)] + ["s_mov_b64 exec, 0xffffff\nbuffer_store_dwordx4 v[200:203], v4, s[8:11], s46 offen offset:2048 sc1\ns_mov_b64 exec, -1"]
    pz = [f"buffer_store_dwordx4 v[200:203], v4, s[28:31], s57 offen sc1\ns_add_u32 s57, s57, 1024" for m in range(5)]
    j3par = f"""s_mov_b32 s16, s52
s_mov_b32 s17, s53
s_mov_b32 s28, s52
s_mov_b32 s29, s53
s_mov_b32 s18, {576*3456}
s_mov_b32 s30, s18
s_lshl_b32 s56, s100, 7
s_mul_i32 s3, s20, {8*3456}
s_add_u32 s56, s56, s3
s_add_u32 s57, s56, {10*32*3456}
s_mov_b32 s59, 4096
s_lshl_b32 s58, s20, 10
s_and_b32 s3, s20, 1
s_lshl_b32 s3, s3, 2
v_lshrrev_b32 v7, 3, v1
v_and_b32 v13, 2, v7
v_or_b32 v13, s3, v13
v_and_b32 v14, 7, v1
v_xor_b32 v13, v13, v14
v_mul_u32_u24 v7, 3456, v7
v_lshl_add_u32 v{V2}, v13, 4, v7
""" + "\n".join(f"v_add_u32 v{V2+m}, {32*3456}, v{V2+m-1}" for m in range(1, 10))
    xline = [f"""s_lshl_b32 s32, s37, 11
s_add_u32 m0, s32, s36
s_lshl_b32 s32, s37, 7
s_add_u32 s32, s32, s26
buffer_load_dwordx4 v5, s[12:15], s32 offen lds
s_add_u32 m0, m0, 1024
s_add_u32 s37, s37, 1""", """buffer_load_dwordx4 v6, s[12:15], s32 offen lds
s_cmp_eq_u32 s37, 9
s_cselect_b32 s37, 0, s37"""]
    srds = f"""s_waitcnt lgkmcnt(0)
s_mov_b32 s14, {hex(XH_SZ)}
s_mov_b32 s15, 0x20000
s_mov_b32 s10, {hex(WS_END)}
s_mov_b32 s11, 0x20000
s_mov_b32 s6, s40
s_mov_b32 s7, s41
s_mov_b32 s19, 0x20000
s_mov_b32 s31, 0x20000"""
    s1 = [f"buffer_load_dwordx4 v{V2+m}, s[16:19], s56 offen lds\ns_add_u32 m0, m0, s59" for m in range(10)]
    s1[0] = f"s_add_u32 m0, s58, {UP}\n" + s1[0]
    bsample = "v_and_b32 v197, 7, v1\nv_lshlrev_b32 v197, 5, v197\nv_mov_b32 v196, 1\ns_cmp_lg_u32 s20, 0\ns_cbranch_scc1 L_bs#\nglobal_load_dword v196, v197, s[42:43] sc1 @opt\nL_bs#:"
    s2_ = [f"buffer_load_dwordx4 v{V2+m}, s[28:31], s57 offen lds @tag=s2_{m}\ns_add_u32 m0, m0, s59" for m in range(10)]
    s2_[0] = f"s_add_u32 m0, s58, {XO}\n" + s2_[0]
    misc = Rec()
    misc(f"""v_mov_b32 v200, -1
v_mov_b32 v201, -1
v_mov_b32 v202, -1
v_mov_b32 v203, -1
s_lshl2_add_u32 s46, s2, s20
s_mul_i32 s46, s46, 2432
s_add_u32 s46, s46, {hex(XH1)}""")
    kv_addr_setup(misc)
    scal = f"""s_cmp_eq_u32 s24, 0
s_mov_b32 s36, {fl(SC)}
s_cselect_b32 s3, {fl(1/24)}, s36
s_cselect_b32 s37, 0, s36
v_mov_b32 v8, s36
v_mov_b32 v9, s3
v_mov_b32 v10, s37
v_cmp_eq_u32 vcc, 0, v3
v_cndmask_b32 v9, v8, v9, vcc
v_cndmask_b32 v10, v8, v10, vcc
s_mov_b32 s37, {hex(XH0)}
s_waitcnt lgkmcnt(0)
s_barrier"""
    k(srds)
    stamp(k, 1)
    emit(k, xline*3)
    k(f"""s_and_b32 s3, s2, 7
s_and_b32 s100, s23, 3
s_mul_i32 s99, s3, 3
s_add_u32 s100, s99, s100
s_lshr_b32 s3, s98, 3
s_cmp_ge_u32 s98, 192
s_cselect_b32 s100, s3, s100""")
    k(j3par)
    k(f"""s_cmp_ge_u32 s98, 216
s_cselect_b32 s99, 1, 0
s_cselect_b32 s18, 0, s18
s_mov_b32 s30, s18
s_mul_i32 s35, s24, 72
s_mul_i32 s32, s20, 18
s_add_u32 s35, s35, s32
s_mul_i32 s35, s35, 3456
s_lshl_b32 s32, s100, 7
s_add_u32 s35, s35, s32""")
    warm = [f"s_mov_b32 m0, {157*1024}\nbuffer_load_dwordx4 v{V2}, s[16:19], s35 offen lds\ns_add_u32 s35, s35, {8*3456}"]*3
    f_image(k, "p1", "v4", 41)
    stamp(k, 2)
    emit(k, misc.l[:7])
    k(f"""s_sub_u32 s3, s98, 216
s_cmp_ge_u32 s3, 8
s_cbranch_scc1 L_p1_nz
s_lshl2_add_u32 s3, s24, s20
s_lshl_b32 s3, s3, 12
s_add_u32 s3, s3, {hex(CNT)}""")
    k.optional(True)
    for m in range(4): k(f"buffer_store_dwordx4 v[200:203], v4, s[8:11], s3 offen offset:{1024*m} sc1")
    k(f"""v_mov_b32 v16, 1
s_lshl_b32 s3, s24, 5
v_mov_b32 v17, s3
s_waitcnt vmcnt(0)
s_barrier
s_cmp_lg_u32 s20, 0
s_cbranch_scc1 L_p1_nz
s_mov_b64 exec, 1
global_store_dword v17, v16, s[42:43] sc1
s_mov_b64 exec, -1""")
    k.optional(False)
    k("L_p1_nz:")
    emit(k, merge(xline*6, misc.l[7:]))
    k("s_barrier")
    emit(k, warm)
    k("s_cmp_ge_u32 s98, 144\ns_cbranch_scc1 L_p1_b\ns_waitcnt vmcnt(3)")
    stamp(k, 4)
    rows_read_addr(k, 10, 11); rows_read(k, 10, 11)
    k(scal)
    stamp(k, 5)
    emit(k, sym_gemm(False, merge(pA[:10] + pC, pz0 + s1 + s2_[:8])))
    k("s_branch L_p1_e\nL_p1_b:")
    k(f"""s_cmp_lt_u32 s20, 2
s_cselect_b32 s12, s48, s50
s_cselect_b32 s13, s49, s51
s_mov_b32 s14, {2048*578}
s_sub_u32 s101, s98, 144
s_mul_i32 s3, s101, 9248
s_and_b32 s32, s20, 1
s_mul_i32 s32, s32, 5120
s_add_u32 s3, s3, s32
s_mul_i32 s32, s20, 5120
s_add_u32 m0, s32, {UP}""")
    wd = lambda: [f"buffer_load_dwordx4 v4, s[12:15], s3 offen offset:{1024*m} lds" for m in range(4)] + ["s_add_u32 s3, s3, 4096\ns_add_u32 m0, m0, 4096\nbuffer_load_dwordx4 v4, s[12:15], s3 offen lds"]
    emit(k, wd()); k.optional(True)
    k(f"s_cmp_lt_u32 s98, 240\ns_cbranch_scc1 L_p1_nw\ns_add_u32 s3, s3, {16*9248 - 4096}\ns_add_u32 m0, m0, {20480 - 4096}")
    emit(k, wd()); k("s_waitcnt vmcnt(13)\ns_branch L_p1_nw2"); k.optional(False)
    k("L_p1_nw:\ns_waitcnt vmcnt(8)\nL_p1_nw2:")
    stamp(k, 4)
    rows_read_addr(k, 10, 11); rows_read(k, 10, 11)
    k(scal)
    stamp(k, 5)
    emit(k, sym_gemm(False, pz0 + [""]*4 + s2_[:8]))
    k("s_waitcnt vmcnt(11)")
    k("L_p1_e:")
    k(bsample.replace('#', 'b'))
    stamp(k, 6)
    def fin(k, slot, sc01, dst):
        a = ACC + 8*slot
        for r in range(4): k(f"v_{'add' if r < 2 else 'sub'}_f32 v{a+r}, v{a+r}, v{a+4+r}")
        for r in range(4): k(f"v_mul_f32 v{a+r}, {sc01[r] if (slot == 0 and r < 2) else 's36'}, v{a+r}")
        k(f"v_cvt_pk_bf16_f32 v{dst}, v{a}, v{a+1}\nv_cvt_pk_bf16_f32 v{dst+1}, v{a+2}, v{a+3}")
    for slot in range(5): fin(k, slot, ('v9', 'v9'), ACC+8*slot+4)
    k(f"v_cmp_eq_f32 vcc, 0, v10\nv_cndmask_b32 v13, 1.0, 0, vcc")
    sumsq(k, 'p1', lambda s_: ACC+8*s_, 13)
    ssst = y2_exchange_store(k, 'p1', 37, SS0, XO + 61*1024, S1F, lambda s_: ACC+8*s_+4, 8, san=True, defer=True)
    ssflag = lambda t: [f"""s_mov_b32 s34, 0
L_p1_bc{t}:
s_waitcnt vmcnt(0)
v_cmp_ne_u32 s[48:49], 1, v196
s_cmp_eq_u64 s[48:49], 0
s_cbranch_scc1 L_p1_bk{t}
s_add_u32 s34, s34, 1
s_cmp_gt_u32 s34, {SPIN}
s_cbranch_scc1 L_p1_bk{t}
s_sleep 2
global_load_dword v196, v197, s[42:43] sc1 @opt
s_branch L_p1_bc{t}
L_p1_bk{t}:
s_barrier
""" + ssst.replace("L_p1_noss", "L_p1_noss" + t)]
    k(f"s_mov_b32 s36, {fl(SC)}")
    stamp(k, 7)
    k("s_cmp_lt_u32 s98, 144\ns_cbranch_scc1 L_p1_j3")
    k(f"""v_and_b32 v16, 7, v1
v_lshrrev_b32 v17, 3, v1
v_mul_u32_u24 v18, 1156, v16
v_add_u32 v18, {UP}, v18
s_lshl_b32 s3, s20, 3
s_add_u32 s3, s3, 128
v_add_u32 v19, s3, v17
v_lshl_add_u32 v17, v17, 3, s20
v_lshl_add_u32 v20, v17, 2, v18
v_lshl_add_u32 v21, v19, 2, v18
v_add_u32 v22, 10240, v20
v_add_u32 v23, 10240, v21
v_cmp_eq_u32 s[50:51], 0, v17
v_mul_u32_u24 v17, {JP_ST}, v17
v_lshl_add_u32 v17, v16, 4, v17
v_mul_u32_u24 v19, {JP_ST}, v19
v_lshl_add_u32 v19, v16, 4, v19
s_lshl_b32 s38, s101, 7
s_add_u32 s38, s38, {hex(WT)}
s_mov_b32 s40, 0x05040100
s_mov_b32 s41, 0x07060302
s_mov_b32 s35, 0xffff
""")
    k("L_p1_tj:")
    steps = [(20, 22, 17, 0), (20, 22, 17, 4), (20, 22, 17, 64), (20, 22, 17, 68), (21, 23, 19, 0)]
    R = lambda st: 24 + 8*st
    for st, (ar_, ai_, _, dj) in enumerate(steps):
        for q, va in enumerate((ar_, ai_)):
            k(f"ds_read_b32 v{R(st)+4*q+2}, v{va} offset:{4*dj}\nds_read2_b32 {vr(R(st)+4*q,2)}, v{va} offset0:{144+dj} offset1:{145+dj}")
        if st == 0:
            for q in range(2): k(f"ds_read_u16 v{64+2*q}, v18 offset:{576+10240*q}\nds_read_u16 v{65+2*q}, v18 offset:{576+578+10240*q}")
    for st, (ar_, ai_, va, dj) in enumerate(steps):
        r_ = R(st); o = 68 + 4*st
        if st == 4: k("s_cmp_ge_u32 s20, 2\ns_cbranch_scc1 L_p1_te")
        for q in range(2):
            k(f"v_alignbit_b32 v{r_+4*q}, v{r_+4*q+1}, v{r_+4*q}, 16")
            if st == 0:
                k(f"v_bfi_b32 v{64+2*q}, s35, v{64+2*q}, v{r_+4*q+2}\nv_bfi_b32 v{65+2*q}, s35, v{65+2*q}, v{r_+4*q}")
                k(f"v_cndmask_b32 v{r_+4*q+2}, v{r_+4*q+2}, v{64+2*q}, s[50:51]\nv_cndmask_b32 v{r_+4*q}, v{r_+4*q}, v{65+2*q}, s[50:51]")
        k(f"""v_perm_b32 v{o}, v{r_+6}, v{r_+2}, s40
v_perm_b32 v{o+1}, v{r_+6}, v{r_+2}, s41
v_perm_b32 v{o+2}, v{r_+4}, v{r_}, s40
v_perm_b32 v{o+3}, v{r_+4}, v{r_}, s41
s_add_u32 s3, s38, {dj*JP_ST}
buffer_store_dwordx4 {vr(o)}, v{va}, s[8:11], s3 offen sc1""" + (" @opt" if st == 4 else ""))
    k(f"""L_p1_te:
s_waitcnt lgkmcnt(0)
s_sub_u32 s3, s101, 96
s_cmp_ge_u32 s3, 16
s_cbranch_scc1 L_p1_td
s_add_u32 s101, s101, 16
s_add_u32 s38, s38, 2048""")
    for v in (18, 20, 21, 22, 23): k(f"v_add_u32 v{v}, 20480, v{v}")
    k("s_branch L_p1_tj\nL_p1_td:\ns_cmp_lg_u32 s99, 0\ns_cbranch_scc1 L_k1_oth\ns_barrier")
    emit(k, s1)
    emit(k, ssflag('c'))
    k("L_p1_j3:\ns_waitcnt vmcnt(2)\ns_barrier")
    stamp(k, 8)
    k(f"""v_lshrrev_b32 v11, 2, v2           ; r
v_and_b32 v12, 2, v11
v_and_b32 v13, 1, v3
v_lshl_or_b32 v12, v13, 2, v12     ; 2f
s_lshl_b32 s3, s20, 1
v_xor_b32 v12, s3, v12
v_lshlrev_b32 v12, 4, v12
v_lshl_add_u32 v12, v11, 7, v12
v_and_b32 v13, 3, v2
v_lshl_add_u32 v12, v13, 3, v12
v_lshl_add_u32 v12, v3, 10, v12
v_add_u32 v11, {UP}, v12
v_add_u32 v12, {XO}, v12""")
    def trd(r, kk):
        for hh in range(2):
            va, o = ('v11', kk*4096) if kk < 10 else ('v12', (kk-10)*4096)
            r(f"ds_read_b64_tr_b16 {vr(XB+4*kk+2*hh,2)}, {va} offset:{o + 512*hh}")
    adr = Rec()
    adr(f"""s_lshl2_add_u32 s39, s100, s20
s_mul_i32 s39, s39, 18432
s_add_u32 s39, s39, {hex(WQ)}
s_lshl_b32 s38, s24, 11
s_add_u32 s38, s38, s39
s_lshr_b32 s3, s27, 1
s_lshl_b32 s3, s3, 10
s_add_u32 s39, s39, s3
s_and_b32 s3, s27, 1
s_lshl3_add_u32 s39, s3, s39""")
    adr(f"""s_lshl3_add_u32 s46, s100, s24
s_lshl_b32 s46, s46, 7
s_add_u32 s46, s46, {hex(F_Q)}
""")
    k(f"""s_mov_b32 s28, s8
s_mov_b32 s29, s9
s_cmp_lt_u32 s98, 144
s_cselect_b32 s30, {hex(PZ1_END)}, 0
s_lshl2_add_u32 s57, s98, s20
s_mul_i32 s57, s57, 5120
s_add_u32 s57, s57, {hex(O1)}""")
    dl = p2_data_loads()
    hooks = {J3ARR: ssflag('a') + pz[:2], J3ARR+1: pz[2:4], J3ARR+2: pz[4:]}
    g = sym_gemm(False, adr.l + pA + pB, xrd=trd, hooks=hooks)
    emit(k, [x for x in g if x])
    stamp(k, 9)
    ep = Rec()
    for p in range(2):
        d = ACC + 16*p + 4
        fin(ep, 2*p, ('v9', 'v10'), d); fin(ep, 2*p+1, None, d+2)
    fin(ep, 4, None, ACC+36)
    def stores(tag):
        for p in range(2): k(f"buffer_store_dwordx4 {vr(ACC+16*p+4)}, v4, s[8:11], s38 offen offset:{1024*p} sc1")
        opt_slot(k, tag, 4, lambda: k(f"buffer_store_dwordx2 {vr(ACC+36,2)}, v4, s[8:11], s39 offen sc1" if not os.environ.get('NOS4') else "s_nop 0"))
    k("s_cmp_ge_u32 s98, 144\ns_cbranch_scc1 L_k1_j3b")
    emit(k, p2_addr(XH0, XH1, SS0))
    k("s_waitcnt lgkmcnt(0)\ns_barrier")
    emit(k, merge(dl[:8], merge(ep.l + p2_restore(), prd)))
    ss_wait(k, 'p1c')
    stamp(k, 10); count(k, 1, 34)
    emit(k, dl[8:])
    stores('j3a')
    stamp(k, 11)
    kv_dma_start(k)
    prof_dump(k, False)
    if PROF: prof_init(k, 2)
    k("s_branch L_p2_go\nL_k1_j3b:")
    emit(k, ep.l); stores('j3b')
    stamp(k, 10)
    emit(k, flag_lines('j3b', 46))
    k("s_branch L_kp_side\nL_k1_oth:")
    emit(k, ssflag('b'))
    k("s_branch L_kp_side")

J3ARR = int(os.environ.get('J3ARR', 3))
KNAME = "interleave_layers__spectral_gfnet__linear_attn_block__prompt_kernel"
def kernelP():
    k = Kern(KNAME)
    prof_init(k, 1)
    k(f"""s_cmp_ge_u32 s2, 256
s_cbranch_scc1 L_kp_exit
s_load_dwordx2 s[12:13], s[0:1], 0
s_load_dwordx2 s[8:9], s[0:1], 64
s_load_dwordx4 s[48:51], s[0:1], 8
s_load_dwordx4 s[52:55], s[0:1], 32
s_load_dwordx4 s[40:43], s[0:1], 48
s_getpc_b64 s[56:57]
L_k1_pc:
s_sub_u32 s56, s56, L_k1_pc-{KNAME}
s_subb_u32 s57, s57, 0
s_bfe_u32 s3, s2, 0x30003
s_lshl_b32 s3, s3, 13
v_lshl_add_u32 v8, v0, 7, s3
v_min_u32 v8, L_code_end-{KNAME}-4, v8
v_mov_b32 v9, s57
v_add_co_u32 v8, vcc, s56, v8
v_addc_co_u32 v9, vcc, 0, v9, vcc
v_cmp_gt_u32 vcc, 64, v0
s_cbranch_vccz L_k1_nopf
global_load_dword v252, v[8:9], off @opt
L_k1_nopf:""")
    lane_setup(k)
    p3_map(k)
    k(f"""s_mov_b32 s60, s23
s_mov_b32 s45, 0
s_lshr_b32 s21, s2, 5              ; cb
s_and_b32 s22, s2, 7
s_bfe_u32 s98, s2, 0x10003
s_lshl_b32 s98, s98, 6
s_lshl3_add_u32 s98, s21, s98
s_add_u32 s98, s98, s22
s_and_b32 s23, s2, 15              ; y
s_lshl3_add_u32 s24, s23, s21
s_add_u32 s24, s24, 128            ; 144 + (y-2)*8 + cb
s_lshl1_add_u32 s25, s21, s23
s_add_u32 s25, s25, 128
s_cmp_lt_u32 s23, 2
s_cselect_b32 s24, s25, s24
s_bitcmp1_b32 s2, 4
s_cselect_b32 s98, s24, s98""")
    phase_P1(k)
    k("""L_kp_layer:
s_cmp_ge_u32 s98, 144
s_cbranch_scc1 L_kp_pref""")
    phase_P2(k)
    k("s_cmp_lg_u32 s45, 0\ns_cbranch_scc1 L_kp_kv1")
    fq_addr(k, 251)
    k("v_mov_b32 v250, 0")
    spin_check(k, 'p2q2', 250, 251, 36)
    k('s_barrier')
    emit(k, kv_dma(0, KVE))
    k("L_kp_kv1:")
    emit(k, kv_dma(KVE, 22)); kv_last(k, 'p2')
    k("L_kp_p3:")
    stamp(k, 4)
    phase_P3(k)
    phase_P4(k)
    k("L_kp_side:")
    prof_dump(k, False)
    if PROF: prof_init(k, 2)
    k("""s_cmp_ge_u32 s98, 243
s_cbranch_scc1 L_kp_pz
s_cmp_ge_u32 s98, 216
s_cbranch_scc1 L_kp_j4""")
    role_J2(k, 144)
    k("s_branch L_kp_sd\nL_kp_j4:")
    role_J4(k, 216)
    k("L_kp_pz:")
    k(f"L_kp_sd:\ns_sub_u32 s36, s98, 144\ns_lshl_b32 s36, s36, 7\ns_add_u32 s36, s36, {hex(F_J)}")
    emit(k, flag_lines('js', 36))
    fq_addr(k, 251)
    k("v_mov_b32 v250, 0")
    spin_check(k, 'sq2', 250, 251, 36)
    k('s_barrier')
    emit(k, p2_addr(XH0, XH1, SS0) + p2_data_loads()[:8])
    kv_dma_start(k)
    emit(k, kv_dma(0, 22)); kv_last(k, 'pf0')
    ss_wait(k, 'sds')
    k('s_barrier\ns_branch L_kp_p3')
    k("L_kp_pref:")
    kv_dma_start(k)
    emit(k, kv_dma(0, 22)); kv_last(k, 'pf')
    k("s_branch L_kp_p3\nL_kp_exit:\ns_endpgm\nL_code_end:")
    return k

if __name__ == "__main__":
    write_module(sys.argv[1], [(KNAME, 256, 256, 160*1024)], [kernelP()])
```
